```python
import torch

def _softmax(x, axis=-1):
    return torch.softmax(x, dim=axis)

def _gelu(x):
    return torch.nn.functional.gelu(x, approximate='tanh')

def _silu(x):
    return torch.nn.functional.silu(x)

def _sigmoid(x):
    return torch.sigmoid(x)

def _layernorm(x, axis=-1, eps=1e-05):
    m = x.mean(dim=axis, keepdim=True)
    v = x.var(dim=axis, keepdim=True, unbiased=False)
    return (x - m) / torch.sqrt(v + eps)

def _scatter_add(tgt, idx, src, axis=0):
    return tgt.clone().index_add_(axis, idx, src)

def _segment_sum(src, seg, n):
    out = torch.zeros((n,) + src.shape[1:], dtype=src.dtype)
    return out.index_add_(0, seg, src)

def _pad(x, pw):
    flat = tuple((v for pair in reversed(pw) for v in pair))
    return torch.nn.functional.pad(x, flat)
kernel_name = 'adaLN_cond__gqa_block_cached__glu_gated_bilinear__decode'

def setup_inputs():

    _w = lambda a: (lambda t: t.to(torch.bfloat16) if t.is_floating_point() else t)(torch.as_tensor(a))

    def _A_setup():
        B, Sq, D = (2, 1, 512)
        Hq, Hkv, Sk, Dh = (32, 8, 32768, 128)
        assert Hq % Hkv == 0, (Hq, Hkv)
        return {'x': _w((lambda *s: torch.randn(*s, dtype=torch.bfloat16) * 0.1)(B, Sq, D)), 'k_cache': _w((lambda *s: torch.randn(*s, dtype=torch.bfloat16) * 0.8)(B, Hkv, Sk, Dh)), 'v_cache': _w((lambda *s: torch.randn(*s, dtype=torch.bfloat16) * 12.8)(B, Hkv, Sk, Dh)), 'wq': _w((lambda *s: torch.randn(*s, dtype=torch.bfloat16) * 0.8)(D, Hq * Dh) * D ** (-0.5)), 'wo': _w((lambda *s: torch.randn(*s, dtype=torch.bfloat16) * 12.8)(Hq * Dh, D) * (Hq * Dh) ** (-0.5))}
    _A_in = _A_setup()

    def _B_setup():
        B, S, D, F = (2, 1, 512, 1792)
        return {'x': _w((lambda *s: torch.randn(*s, dtype=torch.bfloat16) * 0.1)(B, S, D)), 'w_gate': _w((lambda *s: torch.randn(*s, dtype=torch.bfloat16) * 12.8)(D, F) * D ** (-0.5)), 'w_up': _w((lambda *s: torch.randn(*s, dtype=torch.bfloat16) * 12.8)(D, F) * D ** (-0.5)), 'w_down': _w((lambda *s: torch.randn(*s, dtype=torch.bfloat16) * 12.8)(F, D) * F ** (-0.5))}
    _B_in = _B_setup()
    return {'A_x': _A_in['x'], 'A_k_cache': _A_in['k_cache'], 'A_v_cache': _A_in['v_cache'], 'A_wq': _A_in['wq'], 'A_wo': _A_in['wo'], 'B_x': _B_in['x'], 'B_w_gate': _B_in['w_gate'], 'B_w_up': _B_in['w_up'], 'B_w_down': _B_in['w_down'], 'c': _w((lambda *s: torch.randn(*s, dtype=torch.bfloat16) * 0.2)(2, 512) * 8.0), 'w_mod': _w((lambda *s: torch.randn(*s, dtype=torch.bfloat16) * 0.2)(512, 6 * 512) * 512 ** (-0.5) * 8.0)}

def reference(A_x, A_k_cache, A_v_cache, A_wq, A_wo, B_x, B_w_gate, B_w_up, B_w_down, c, w_mod):

    def _A_ref(x, k_cache, v_cache, wq, wo):
        B, Sq, D = x.shape
        Hq, Dh = (32, 128)
        Hkv = k_cache.shape[1]
        rep = Hq // Hkv
        q = (lambda x, *d: x.permute(*d))((x @ wq).reshape(B, Sq, Hq, Dh), 0, 2, 1, 3)
        k = (lambda x, n, axis: torch.repeat_interleave(x, n, dim=axis))(k_cache, rep, axis=1)
        v = (lambda x, n, axis: torch.repeat_interleave(x, n, dim=axis))(v_cache, rep, axis=1)
        scores = torch.einsum('bhqd,bhkd->bhqk', q, k) * Dh ** (-0.5)
        p = _softmax(scores, axis=-1)
        o = torch.einsum('bhqk,bhkd->bhqd', p, v)
        return (lambda x, *d: x.permute(*d))(o, 0, 2, 1, 3).reshape(B, Sq, Hq * Dh) @ wo

    def _B_ref(x, w_gate, w_up, w_down):
        g = torch.einsum('bsd,df->bsf', x, w_gate)
        u = torch.einsum('bsd,df->bsf', x, w_up)
        h = g * u
        return torch.einsum('bsf,fd->bsd', h, w_down)
    x = A_x
    mod = (_silu(c) @ w_mod).reshape(c.shape[0], 6, 1, -1)
    sa, ca, ga, sb, cb, gb = (mod[:, 0].clone(), mod[:, 1].clone(), mod[:, 2].clone(), mod[:, 3].clone(), mod[:, 4].clone(), mod[:, 5].clone())
    h = _layernorm(x, axis=-1) * (1 + ca) + sa
    x = x + ga * _A_ref(h, A_k_cache, A_v_cache, A_wq, A_wo)
    h = _layernorm(x, axis=-1) * (1 + cb) + sb
    x = x + gb * _B_ref(h, B_w_gate, B_w_up, B_w_down)
    return x
```

```python
import sys

OUT = "adaLN_cond__gqa_block_cached__glu_gated_bilinear__decode.s"
REF = OUT + ".ref"

KA_X, KA_K, KA_V, KA_WQ, KA_WO, KA_BX, KA_WG, KA_WU, KA_WD, KA_C, KA_WMOD, KA_OUT, KA_DBG, KA_WS = [8 * i for i in range(14)]

WS_MOD = 0
WS_Q = 32768
WS_X1 = 49152
WS_ACC = 65536
WS_ACC_WO = 65536
WS_ACC_DN = 69632
WS_ACC_GU = 73728
WS_ACC_END = 102400
WS_PM = 131072
WS_PL = 139264
WS_PO = 262144
WS_BYTES = 0x20000000

SCALE_C = 1.4426950408889634 / (128 ** 0.5)

import struct


def f32hex(x):
    return "0x%08x" % struct.unpack("<I", struct.pack("<f", x))[0]


class Asm:
    def __init__(self):
        self.lines = []

    def __call__(self, s):
        self.lines.append("    " + s)

    def label(self, s):
        self.lines.append(s + ":")

    def raw(self, s):
        self.lines.append(s)


a = Asm()
KERNELS = []


def kernel_begin(name):
    a.raw(f".globl {name}")
    a.raw(".p2align 8")
    a.raw(f".type {name},@function")
    a.label(name)


def kernel_end(name, vgprs, sgprs=96):
    KERNELS.append((name, vgprs, sgprs))


def load_ptr(dst, off):
    a(f"s_load_dwordx2 s[{dst}:{dst+1}], s[0:1], {off}")


def fin_srd(dst, nbytes):
    a(f"s_mov_b32 s{dst+2}, {nbytes}")
    a(f"s_mov_b32 s{dst+3}, 0x00020000")


def rne(v, tmp=None):
    t = v if tmp is None else tmp
    a(f"v_cvt_pk_bf16_f32 v{t}, v{v}, v{v}")
    a(f"v_lshlrev_b32 v{v}, 16, v{t}")


def wave_sum_to_sgpr(v, s, op="add"):
    opn = {"add": "v_add_f32", "max": "v_max_f32"}[op]
    for ctl in ["quad_perm:[1,0,3,2]", "quad_perm:[2,3,0,1]", "row_half_mirror", "row_mirror"]:
        a("s_nop 1")
        a(f"{opn}_dpp v{v}, v{v}, v{v} {ctl} row_mask:0xf bank_mask:0xf")
    a("s_nop 1")
    a(f"{opn}_dpp v{v}, v{v}, v{v} row_bcast:15 row_mask:0xa bank_mask:0xf")
    a("s_nop 1")
    a(f"{opn}_dpp v{v}, v{v}, v{v} row_bcast:31 row_mask:0xc bank_mask:0xf")
    a("s_nop 1")
    a(f"v_readlane_b32 s{s}, v{v}, 63")


def ln_prologue(xv, srd_ws, mod_shift, mod_scale, lds_red, vt):
    a(f"v_lshrrev_b32 v{vt}, 7, v0")
    a(f"v_mul_u32_u24 v{vt}, 12288, v{vt}")
    a(f"v_and_b32 v{vt+1}, 127, v0")
    a(f"v_lshl_add_u32 v{vt}, v{vt+1}, 4, v{vt}")
    a(f"s_mov_b32 s42, {WS_MOD + mod_shift*2048}")
    a(f"s_mov_b32 s43, {WS_MOD + mod_scale*2048}")
    a(f"buffer_load_dwordx4 v[{vt+4}:{vt+7}], v{vt}, s[{srd_ws}:{srd_ws+3}], s42 offen")
    a(f"buffer_load_dwordx4 v[{vt+8}:{vt+11}], v{vt}, s[{srd_ws}:{srd_ws+3}], s43 offen")
    a(f"v_add_f32 v{vt}, v{xv}, v{xv+1}")
    a(f"v_add_f32 v{vt+1}, v{xv+2}, v{xv+3}")
    a(f"v_add_f32 v{vt}, v{vt}, v{vt+1}")
    wave_sum_to_sgpr(vt, 40)
    a(f"v_lshrrev_b32 v{vt+1}, 6, v0")
    a(f"v_lshlrev_b32 v{vt+1}, 2, v{vt+1}")
    a(f"v_mov_b32 v{vt}, s40")
    a(f"ds_write_b32 v{vt+1}, v{vt} offset:{lds_red}")
    a("s_waitcnt lgkmcnt(0)")
    a("s_barrier")
    a(f"v_lshrrev_b32 v{vt+1}, 7, v0")
    a(f"v_lshlrev_b32 v{vt+1}, 3, v{vt+1}")
    a(f"ds_read_b64 v[{vt+2}:{vt+3}], v{vt+1} offset:{lds_red}")
    a("s_waitcnt lgkmcnt(0)")
    a(f"v_add_f32 v{vt+2}, v{vt+2}, v{vt+3}")
    a(f"v_mul_f32 v{vt+2}, {f32hex(1.0/512)}, v{vt+2}")
    for i in range(4):
        a(f"v_sub_f32 v{vt+3}, v{xv+i}, v{vt+2}")
        if i == 0:
            a(f"v_mul_f32 v{vt}, v{vt+3}, v{vt+3}")
        else:
            a(f"v_fmac_f32 v{vt}, v{vt+3}, v{vt+3}")
    wave_sum_to_sgpr(vt, 41)
    a(f"v_lshrrev_b32 v{vt+1}, 6, v0")
    a(f"v_lshlrev_b32 v{vt+1}, 2, v{vt+1}")
    a(f"v_mov_b32 v{vt}, s41")
    a(f"ds_write_b32 v{vt+1}, v{vt} offset:{lds_red+16}")
    a("s_waitcnt lgkmcnt(0)")
    a("s_barrier")
    a(f"v_lshrrev_b32 v{vt+1}, 7, v0")
    a(f"v_lshlrev_b32 v{vt+1}, 3, v{vt+1}")
    a(f"ds_read_b64 v[{vt}:{vt+1}], v{vt+1} offset:{lds_red+16}")
    a("s_waitcnt lgkmcnt(0)")
    a(f"v_add_f32 v{vt}, v{vt}, v{vt+1}")
    a(f"v_mul_f32 v{vt}, {f32hex(1.0/512)}, v{vt}")
    rne(vt)
    rne(vt + 2)
    a(f"v_add_f32 v{vt}, {f32hex(1e-5)}, v{vt}")
    rne(vt)
    a(f"v_sqrt_f32 v{vt}, v{vt}")
    a("s_nop 0")
    rne(vt)
    a(f"v_rcp_f32 v{vt}, v{vt}")
    a("s_waitcnt vmcnt(0)")
    for i in range(4):
        a(f"v_sub_f32 v{xv+i}, v{xv+i}, v{vt+2}")
        rne(xv + i)
        a(f"v_mul_f32 v{xv+i}, v{xv+i}, v{vt}")
        rne(xv + i)
        a(f"v_add_f32 v{vt+8+i}, 1.0, v{vt+8+i}")
        rne(vt + 8 + i)
        a(f"v_mul_f32 v{xv+i}, v{xv+i}, v{vt+8+i}")
        rne(xv + i)
        a(f"v_add_f32 v{xv+i}, v{xv+i}, v{vt+4+i}")
        rne(xv + i)


def unpack_x4(src_pair, dst):
    a(f"v_and_b32 v{dst+1}, 0xffff0000, v{src_pair}")
    a(f"v_lshlrev_b32 v{dst}, 16, v{src_pair}")
    a(f"v_and_b32 v{dst+3}, 0xffff0000, v{src_pair+1}")
    a(f"v_lshlrev_b32 v{dst+2}, 16, v{src_pair+1}")


def gemv_nsplit(name, which):
    nwg = 96 if which == "mod" else 128
    row_stride = 6144 if which == "mod" else 8192
    w_bytes = 512 * row_stride
    kernel_begin(name)
    a(f"s_cmp_ge_u32 s2, {nwg}")
    a(f"s_cbranch_scc1 {name}_end")
    load_ptr(8, KA_C if which == "mod" else KA_X)
    load_ptr(12, KA_WMOD if which == "mod" else KA_WQ)
    load_ptr(16, KA_WS)
    a("s_waitcnt lgkmcnt(0)")
    fin_srd(8, 2048)
    fin_srd(12, w_bytes)
    fin_srd(16, WS_BYTES)
    if which == "mod":
        nz = (WS_ACC_END - WS_ACC) // 1024
        a(f"s_cmp_ge_u32 s2, {nz}")
        a(f"s_cbranch_scc1 {name}_nozero")
        a("s_lshl_b32 s21, s2, 10")
        a("v_lshlrev_b32 v3, 2, v0")
        a("v_add_u32 v3, s21, v3")
        a("v_mov_b32 v6, 0")
        a(f"s_mov_b32 s22, {WS_ACC}")
        a("buffer_store_dword v6, v3, s[16:19], s22 offen")
        a.label(f"{name}_nozero")
    a("v_lshlrev_b32 v2, 3, v0")
    a("buffer_load_dwordx2 v[4:5], v2, s[8:11], 0 offen")
    a("v_lshrrev_b32 v1, 2, v0")
    a(f"s_mov_b32 s20, {row_stride}")
    a("v_mul_lo_u32 v1, v1, s20")
    a("v_and_b32 v2, 3, v0")
    a("v_lshl_add_u32 v1, v2, 4, v1")
    a("s_lshl_b32 s21, s2, 6")
    a("v_add_u32 v1, s21, v1")
    for it in range(8):
        a(f"s_mov_b32 s20, {it*64*row_stride}")
        a(f"buffer_load_dwordx4 v[{32+4*it}:{35+4*it}], v1, s[12:15], s20 offen")
    a("s_waitcnt vmcnt(8)")
    unpack_x4(4, 8)
    if which == "mod":
        for i in range(4):
            a(f"v_mul_f32 v12, {f32hex(-1.4426950408889634)}, v{8+i}")
            a("v_exp_f32 v12, v12")
            a("s_nop 0")
            a("v_add_f32 v12, 1.0, v12")
            a("v_rcp_f32 v12, v12")
            a("s_nop 0")
            a(f"v_mul_f32 v{8+i}, v{8+i}, v12")
            rne(8 + i)
    else:
        ln_prologue(8, 16, 0, 1, 20480, 12)
    a("v_lshlrev_b32 v2, 4, v0")
    a("ds_write_b128 v2, v[8:11]")
    a("s_waitcnt lgkmcnt(0)")
    a("s_barrier")
    a("v_lshrrev_b32 v2, 2, v0")
    a("v_lshlrev_b32 v2, 2, v2")
    for b in range(2):
        for it in range(8):
            a(f"ds_read_b32 v{80+b*8+it}, v2 offset:{(b*512+64*it)*4}")
    for i in range(16):
        a(f"v_mov_b32 v{64+i}, 0")
    a("s_waitcnt vmcnt(0) lgkmcnt(0)")
    for it in range(8):
        for q in range(4):
            src = 32 + 4 * it + q
            a(f"v_lshlrev_b32 v12, 16, v{src}")
            a(f"v_and_b32 v13, 0xffff0000, v{src}")
            for b in range(2):
                a(f"v_fmac_f32 v{64+b*8+2*q}, v12, v{80+b*8+it}")
                a(f"v_fmac_f32 v{64+b*8+2*q+1}, v13, v{80+b*8+it}")
    a("v_lshlrev_b32 v2, 6, v0")
    for i in range(4):
        a(f"ds_write_b128 v2, v[{64+4*i}:{67+4*i}] offset:{4096+16*i}")
    a("s_waitcnt lgkmcnt(0)")
    a("s_barrier")
    a("v_and_b32 v2, 63, v0")
    a("v_lshrrev_b32 v3, 5, v2")
    a("v_lshlrev_b32 v3, 5, v3")
    a("v_and_b32 v4, 7, v2")
    a("v_lshl_add_u32 v3, v4, 2, v3")
    a("v_bfe_u32 v4, v2, 3, 2")
    a("v_lshl_add_u32 v3, v4, 6, v3")
    a("v_lshrrev_b32 v4, 6, v0")
    a("v_lshl_add_u32 v3, v4, 12, v3")
    for r in range(16):
        a(f"ds_read_b32 v{32+r}, v3 offset:{4096+r*256}")
    a("s_waitcnt lgkmcnt(0)")
    for r in range(1, 16):
        a(f"v_add_f32 v32, v32, v{32+r}")
    a("v_lshlrev_b32 v3, 2, v0")
    a("ds_write_b32 v3, v32 offset:0")
    a("s_waitcnt lgkmcnt(0)")
    a("s_barrier")
    a("v_cmp_gt_u32 vcc, 64, v0")
    a("s_and_saveexec_b64 s[24:25], vcc")
    a(f"s_cbranch_execz {name}_end")
    for r in range(4):
        a(f"ds_read_b32 v{32+r}, v3 offset:{r*256}")
    a("s_waitcnt lgkmcnt(0)")
    a("v_add_f32 v32, v32, v33")
    a("v_add_f32 v34, v34, v35")
    a("v_add_f32 v32, v32, v34")
    a("v_lshrrev_b32 v4, 5, v0")
    a("v_and_b32 v5, 31, v0")
    a("s_lshl_b32 s21, s2, 5")
    a("v_add_u32 v5, s21, v5")
    if which == "mod":
        rne(32)
        a("v_mul_u32_u24 v4, 3072, v4")
        a("v_add_lshl_u32 v5, v4, v5, 2")
        a(f"buffer_store_dword v32, v5, s[16:19], 0 offen offset:{WS_MOD}")
    else:
        a("v_cvt_pk_bf16_f32 v32, v32, v32")
        a("v_lshlrev_b32 v4, 12, v4")
        a("v_add_lshl_u32 v5, v4, v5, 1")
        a(f"s_mov_b32 s22, {WS_Q}")
        a("buffer_store_short v32, v5, s[16:19], s22 offen")
    a.label(f"{name}_end")
    a("s_endpgm")
    kernel_end(name, 96)


D = 4
NT = 16
VQ = 4
VO = 20
VS = 52
VP = 56
VM, VL, VT, VA = 60, 61, 62, 63
VF = 64
VMC = 72
VK = 80
VV = VK + 16 * D


def attn_kernel(name):
    kernel_begin(name)
    a("s_cmp_ge_u32 s2, 512")
    a(f"s_cbranch_scc1 {name}_end")
    load_ptr(4, KA_K)
    load_ptr(8, KA_V)
    load_ptr(12, KA_WS)
    a("v_lshrrev_b32 v3, 6, v0")
    a("s_nop 0")
    a("v_readfirstlane_b32 s16, v3")
    a("s_waitcnt lgkmcnt(0)")
    fin_srd(4, 134217728)
    fin_srd(8, 134217728)
    fin_srd(12, WS_BYTES)
    a("s_lshl_b32 s17, s2, 18")
    a("s_lshl_b32 s18, s16, 16")
    a("s_add_u32 s17, s17, s18")
    a("v_and_b32 v3, 63, v0")
    a("v_and_b32 v1, 15, v3")
    a("v_lshlrev_b32 v1, 8, v1")
    a("v_lshrrev_b32 v2, 4, v3")
    a("v_lshl_add_u32 v1, v2, 4, v1")
    a("v_lshlrev_b32 v2, 10, v2")
    a("v_and_b32 v73, 15, v3")
    a("v_lshl_add_u32 v2, v73, 4, v2")
    def issue_k(t):
        buf = VK + 16 * (t % D)
        a(f"s_add_u32 s18, s17, {t*4096}")
        for j in range(4):
            a(f"buffer_load_dwordx4 v[{buf+4*j}:{buf+4*j+3}], v1, s[4:7], s18 offen offset:{64*j}")

    def issue_v(t):
        buf = VV + 16 * (t % D)
        a(f"s_add_u32 s19, s17, {t*4096}")
        for j in range(4):
            a(f"buffer_load_dwordx4 v[{buf+4*j}:{buf+4*j+3}], v2, s[8:11], s19 offen offset:{256*j}")

    a("s_lshr_b32 s20, s2, 5")
    a("s_lshl_b32 s20, s20, 10")
    a(f"s_add_u32 s20, s20, {WS_Q}")
    a("v_and_b32 v73, 15, v3")
    a("v_lshlrev_b32 v74, 8, v73")
    a("v_lshrrev_b32 v75, 4, v3")
    a("v_lshl_add_u32 v74, v75, 4, v74")
    a("v_mov_b32 v75, 0x40000000")
    a("v_cmp_gt_u32 vcc, 4, v73")
    a("s_nop 1")
    a("v_cndmask_b32 v74, v75, v74, vcc")
    for j in range(4):
        a(f"buffer_load_dwordx4 v[{VQ+4*j}:{VQ+4*j+3}], v74, s[12:15], s20 offen offset:{64*j}")
    for t in range(D):
        issue_k(t)
        issue_v(t)
    for i in range(32):
        a(f"v_mov_b32 v{VO+i}, 0")
    a(f"v_mov_b32 v{VM}, 0xff800000")
    a(f"v_mov_b32 v{VL}, 0")
    a(f"s_mov_b32 s21, {f32hex(SCALE_C)}")
    for t in range(NT):
        kb = VK + 16 * (t % D)
        vb = VV + 16 * (t % D)
        after_k = 4 + 8 * (min(NT, t + D) - t - 1)
        a(f"s_waitcnt vmcnt({after_k})")
        a(f"v_mfma_f32_16x16x32_bf16 v[{VS}:{VS+3}], v[{kb}:{kb+3}], v[{VQ}:{VQ+3}], 0")
        for j in range(1, 4):
            a(f"v_mfma_f32_16x16x32_bf16 v[{VS}:{VS+3}], v[{kb+4*j}:{kb+4*j+3}], v[{VQ+4*j}:{VQ+4*j+3}], v[{VS}:{VS+3}]")
        if t + D < NT:
            issue_k(t + D)
            a("s_nop 3")
        else:
            a("s_nop 7")
        a("s_nop 1")
        a(f"v_max3_f32 v{VT}, v{VS}, v{VS+1}, v{VS+2}")
        a(f"v_max3_f32 v{VT}, v{VT}, v{VS+3}, v{VM}")
        a(f"v_cmp_gt_f32 vcc, v{VT}, v{VM}")
        a("s_nop 1")
        a(f"s_cbranch_vccz {name}_nr{t}")
        a(f"v_sub_f32 v{VA}, v{VM}, v{VT}")
        a(f"v_mul_f32 v{VA}, s21, v{VA}")
        a(f"v_exp_f32 v{VA}, v{VA}")
        a(f"v_mov_b32 v{VM}, v{VT}")
        a(f"v_mul_f32 v{VL}, v{VL}, v{VA}")
        a("s_nop 0")
        for h in range(4):
            for e in range(8):
                a(f"v_mul_f32_dpp v{VO+h*8+e}, v{VA}, v{VO+h*8+e} row_newbcast:{h} row_mask:0xf bank_mask:0xf")
        a.label(f"{name}_nr{t}")
        a(f"v_mul_f32 v{VMC}, s21, v{VM}")
        for i in range(4):
            a(f"v_fma_f32 v{VP+i}, v{VS+i}, s21, -v{VMC}")
        for i in range(4):
            a(f"v_exp_f32 v{VP+i}, v{VP+i}")
        after_v = 8 * (min(NT, t + D) - t - 1) + (4 if t + D < NT else 0)
        a(f"s_waitcnt vmcnt({after_v})")
        a(f"v_add_f32 v{VT}, v{VP}, v{VP+1}")
        a(f"v_add_f32 v{VA}, v{VP+2}, v{VP+3}")
        a(f"v_add_f32 v{VL}, v{VL}, v{VT}")
        a(f"v_add_f32 v{VL}, v{VL}, v{VA}")
        for j in range(4):
            for q in range(4):
                a(f"v_lshlrev_b32 v{VF+2*q}, 16, v{vb+4*j+q}")
                a(f"v_and_b32 v{VF+2*q+1}, 0xffff0000, v{vb+4*j+q}")
            for h in range(4):
                for e in range(8):
                    a(f"v_fmac_f32_dpp v{VO+h*8+e}, v{VP+j}, v{VF+e} row_newbcast:{h} row_mask:0xf bank_mask:0xf")
        if t + D < NT:
            issue_v(t + D)
    a("v_lshrrev_b32 v1, 4, v0")
    a("v_lshlrev_b32 v2, 11, v1")
    a("v_and_b32 v3, 15, v0")
    a("v_lshl_add_u32 v2, v3, 5, v2")
    for h in range(4):
        a(f"ds_write_b128 v2, v[{VO+h*8}:{VO+h*8+3}] offset:{h*512}")
        a(f"ds_write_b128 v2, v[{VO+h*8+4}:{VO+h*8+7}] offset:{h*512+16}")
    a("v_lshlrev_b32 v2, 5, v1")
    a("v_lshl_add_u32 v2, v3, 3, v2")
    a("v_cmp_gt_u32 vcc, 4, v3")
    a("s_and_saveexec_b64 s[24:25], vcc")
    a(f"ds_write_b64 v2, v[{VM}:{VL}] offset:32768")
    a("s_mov_b64 exec, s[24:25]")
    a("s_waitcnt lgkmcnt(0)")
    a("s_barrier")
    a("v_lshrrev_b32 v1, 6, v0")
    a("v_lshlrev_b32 v2, 3, v1")
    for s in range(16):
        a(f"ds_read_b64 v[{80+2*s}:{81+2*s}], v2 offset:{32768+s*32}")
    a("v_and_b32 v3, 63, v0")
    a("v_lshlrev_b32 v3, 3, v3")
    a("v_lshl_add_u32 v3, v1, 9, v3")
    for s in range(16):
        a(f"ds_read_b64 v[{120+2*s}:{121+2*s}], v3 offset:{s*2048}")
    a("s_waitcnt lgkmcnt(0)")
    a("v_max_f32 v4, v80, v82")
    for s in range(2, 16):
        a(f"v_max_f32 v4, v4, v{80+2*s}")
    a("v_mov_b32 v5, 0")
    a("v_mov_b32 v6, 0")
    a("v_mov_b32 v7, 0")
    for s in range(16):
        a(f"v_sub_f32 v8, v{80+2*s}, v4")
        a("v_mul_f32 v8, s21, v8")
        a("v_exp_f32 v8, v8")
        a("s_nop 0")
        a(f"v_fmac_f32 v5, v8, v{81+2*s}")
        a(f"v_fmac_f32 v6, v8, v{120+2*s}")
        a(f"v_fmac_f32 v7, v8, v{121+2*s}")
    a("s_lshl_b32 s20, s2, 11")
    a(f"s_add_u32 s20, s20, {WS_PO}")
    a("buffer_store_dwordx2 v[6:7], v3, s[12:15], s20 offen")
    a("v_and_b32 v9, 63, v0")
    a("v_cmp_eq_u32 vcc, 0, v9")
    a("s_and_saveexec_b64 s[24:25], vcc")
    a("s_lshr_b32 s20, s2, 5")
    a("s_lshl_b32 s20, s20, 9")
    a("s_and_b32 s22, s2, 31")
    a("s_lshl_b32 s22, s22, 2")
    a("s_add_u32 s20, s20, s22")
    a(f"s_add_u32 s22, s20, {WS_PL}")
    a(f"s_add_u32 s20, s20, {WS_PM}")
    a("v_lshlrev_b32 v1, 7, v1")
    a("buffer_store_dword v4, v1, s[12:15], s20 offen")
    a("buffer_store_dword v5, v1, s[12:15], s22 offen")
    a.label(f"{name}_end")
    a("s_endpgm")
    kernel_end(name, VV + 16 * D)


def wo_kernel(name):
    kernel_begin(name)
    a("s_cmp_ge_u32 s2, 64")
    a(f"s_cbranch_scc1 {name}_end")
    load_ptr(8, KA_WO)
    load_ptr(12, KA_WS)
    a("s_waitcnt lgkmcnt(0)")
    fin_srd(8, 4194304)
    fin_srd(12, WS_BYTES)
    a("v_lshrrev_b32 v1, 6, v0")
    a("v_lshlrev_b32 v1, 13, v1")
    a("v_and_b32 v2, 63, v0")
    a("v_lshl_add_u32 v1, v2, 4, v1")
    a("s_lshl_b32 s20, s2, 16")
    a("s_add_u32 s21, s20, 4096")
    for it in range(8):
        a(f"buffer_load_dwordx4 v[{32+4*it}:{35+4*it}], v1, s[8:11], s{20 if it < 4 else 21} offen offset:{(it%4)*1024}")
    a("s_lshr_b32 s22, s2, 1")
    a("s_lshr_b32 s23, s22, 2")
    a("s_and_b32 s24, s22, 3")
    a("s_lshl_b32 s25, s23, 9")
    a("s_lshl_b32 s26, s24, 7")
    a("s_add_u32 s25, s25, s26")
    a("v_lshrrev_b32 v3, 8, v0")
    a("v_lshlrev_b32 v4, 12, v3")
    a(f"s_add_u32 s26, s25, {WS_PM}")
    a(f"s_add_u32 s27, s25, {WS_PL}")
    for i in range(8):
        a(f"buffer_load_dwordx4 v[{64+4*i}:{67+4*i}], v4, s[12:15], s26 offen offset:{16*i}")
    for i in range(8):
        a(f"buffer_load_dwordx4 v[{96+4*i}:{99+4*i}], v4, s[12:15], s27 offen offset:{16*i}")
    a("s_lshl_b32 s25, s23, 16")
    a("s_lshl_b32 s26, s24, 9")
    a("s_add_u32 s25, s25, s26")
    a("s_and_b32 s26, s2, 1")
    a("s_lshl_b32 s26, s26, 8")
    a("s_add_u32 s25, s25, s26")
    a(f"s_add_u32 s25, s25, {WS_PO}")
    a("v_lshlrev_b32 v5, 19, v3")
    a("v_bfe_u32 v6, v0, 6, 2")
    a("v_lshl_add_u32 v5, v6, 14, v5")
    a("v_lshl_add_u32 v5, v2, 2, v5")
    for i in range(8):
        a(f"s_add_u32 s26, s25, {i*2048}")
        a(f"buffer_load_dword v{128+i}, v5, s[12:15], s26 offen")
    a(f"s_mov_b32 s28, {f32hex(SCALE_C)}")
    a("s_waitcnt vmcnt(8)")
    a("v_max_f32 v7, v64, v65")
    for s in range(2, 32):
        a(f"v_max_f32 v7, v7, v{64+s}")
    a("v_mov_b32 v8, 0")
    for s in range(32):
        a(f"v_sub_f32 v{64+s}, v{64+s}, v7")
        a(f"v_mul_f32 v{64+s}, s28, v{64+s}")
        a(f"v_exp_f32 v{64+s}, v{64+s}")
        a("s_nop 0")
        a(f"v_fmac_f32 v8, v{64+s}, v{96+s}")
    for i in range(8):
        a(f"v_mov_b32 v{136+i}, v{64+i}")
    for sq in range(1, 4):
        a(f"v_cmp_eq_u32 vcc, {sq}, v6")
        a("s_nop 1")
        for i in range(8):
            a(f"v_cndmask_b32 v{136+i}, v{136+i}, v{64+sq*8+i}, vcc")
    a("s_waitcnt vmcnt(0)")
    a("v_mul_f32 v9, v136, v128")
    for i in range(1, 8):
        a(f"v_fmac_f32 v9, v{136+i}, v{128+i}")
    a("v_lshlrev_b32 v10, 2, v0")
    a("ds_write_b32 v10, v9")
    a("s_waitcnt lgkmcnt(0)")
    a("s_barrier")
    a("v_lshlrev_b32 v10, 10, v3")
    a("v_lshl_add_u32 v10, v2, 2, v10")
    a("ds_read_b32 v11, v10 offset:0")
    a("ds_read_b32 v12, v10 offset:256")
    a("ds_read_b32 v13, v10 offset:512")
    a("ds_read_b32 v14, v10 offset:768")
    a("v_rcp_f32 v8, v8")
    a("s_waitcnt lgkmcnt(0)")
    a("v_add_f32 v11, v11, v12")
    a("v_add_f32 v13, v13, v14")
    a("v_add_f32 v11, v11, v13")
    a("v_mul_f32 v11, v11, v8")
    rne(11)
    a("v_lshlrev_b32 v10, 8, v3")
    a("v_lshl_add_u32 v10, v2, 2, v10")
    a("ds_write_b32 v10, v11 offset:2048")
    a("s_waitcnt lgkmcnt(0)")
    a("s_barrier")
    a("v_lshrrev_b32 v10, 6, v0")
    a("v_lshlrev_b32 v10, 5, v10")
    for b in range(2):
        for it in range(8):
            a(f"ds_read_b32 v{144+b*8+it}, v10 offset:{2048+b*256+it*4}")
    for i in range(16):
        a(f"v_mov_b32 v{160+i}, 0")
    a("s_waitcnt lgkmcnt(0)")
    for it in range(8):
        for q in range(4):
            src = 32 + 4 * it + q
            a(f"v_lshlrev_b32 v12, 16, v{src}")
            a(f"v_and_b32 v13, 0xffff0000, v{src}")
            for b in range(2):
                a(f"v_fmac_f32 v{160+b*8+2*q}, v12, v{144+b*8+it}")
                a(f"v_fmac_f32 v{160+b*8+2*q+1}, v13, v{144+b*8+it}")
    a("v_lshrrev_b32 v10, 6, v0")
    a("v_lshlrev_b32 v10, 12, v10")
    a("v_lshl_add_u32 v10, v2, 5, v10")
    for b in range(2):
        a(f"ds_write_b128 v10, v[{160+b*8}:{163+b*8}] offset:{4096+b*2048}")
        a(f"ds_write_b128 v10, v[{164+b*8}:{167+b*8}] offset:{4096+b*2048+16}")
    a("s_waitcnt lgkmcnt(0)")
    a("s_barrier")
    a("v_lshlrev_b32 v10, 2, v0")
    for b in range(2):
        for w in range(8):
            a(f"ds_read_b32 v{32+b*8+w}, v10 offset:{4096+w*4096+b*2048}")
    a("s_waitcnt lgkmcnt(0)")
    for b in range(2):
        for w in range(1, 8):
            a(f"v_add_f32 v{32+b*8}, v{32+b*8}, v{32+b*8+w}")
    a(f"s_mov_b32 s20, {WS_ACC_WO}")
    a(f"s_mov_b32 s21, {WS_ACC_WO+2048}")
    a("buffer_atomic_add_f32 v32, v10, s[12:15], s20 offen")
    a("buffer_atomic_add_f32 v40, v10, s[12:15], s21 offen")
    a.label(f"{name}_end")
    a("s_endpgm")
    kernel_end(name, 176)


def gu_kernel(name):
    kernel_begin(name)
    a("s_cmp_ge_u32 s2, 112")
    a(f"s_cbranch_scc1 {name}_end")
    load_ptr(4, KA_X)
    load_ptr(8, KA_WG)
    load_ptr(16, KA_WU)
    load_ptr(12, KA_WS)
    a("s_waitcnt lgkmcnt(0)")
    fin_srd(4, 2048)
    fin_srd(8, 512 * 3584)
    fin_srd(16, 512 * 3584)
    fin_srd(12, WS_BYTES)
    a("s_mul_i32 s20, s2, 9363")
    a("s_lshr_b32 s20, s20, 16")
    a("s_mul_i32 s21, s20, 7")
    a("s_sub_u32 s21, s2, s21")
    a("s_lshl_b32 s22, s20, 5")
    a("v_lshrrev_b32 v1, 5, v0")
    a("v_add_u32 v1, s22, v1")
    a("s_movk_i32 s23, 3584")
    a("v_mul_lo_u32 v1, v1, s23")
    a("v_and_b32 v2, 31, v0")
    a("v_lshl_add_u32 v1, v2, 4, v1")
    a("s_lshl_b32 s23, s21, 9")
    a("v_add_u32 v1, s23, v1")
    for it in range(4):
        a(f"s_mov_b32 s24, {it*8*3584}")
        a(f"buffer_load_dwordx4 v[{32+4*it}:{35+4*it}], v1, s[8:11], s24 offen")
        a(f"buffer_load_dwordx4 v[{48+4*it}:{51+4*it}], v1, s[16:19], s24 offen")
    a("v_lshlrev_b32 v2, 3, v0")
    a("buffer_load_dwordx2 v[4:5], v2, s[4:7], 0 offen")
    a("v_lshlrev_b32 v2, 4, v0")
    a(f"s_mov_b32 s24, {WS_ACC_WO}")
    a("buffer_load_dwordx4 v[24:27], v2, s[12:15], s24 offen")
    a("v_lshrrev_b32 v3, 7, v0")
    a("v_mul_u32_u24 v3, 12288, v3")
    a("v_and_b32 v6, 127, v0")
    a("v_lshl_add_u32 v3, v6, 4, v3")
    a(f"s_mov_b32 s25, {WS_MOD + 2*2048}")
    a(f"buffer_load_dwordx4 v[28:31], v3, s[12:15], s25 offen")
    a("s_waitcnt vmcnt(0)")
    unpack_x4(4, 8)
    for i in range(4):
        rne(24 + i)
        a(f"v_mul_f32 v{24+i}, v{24+i}, v{28+i}")
        rne(24 + i)
        a(f"v_add_f32 v{8+i}, v{8+i}, v{24+i}")
        rne(8 + i)
    a("s_cmp_lg_u32 s2, 0")
    a(f"s_cbranch_scc1 {name}_nox1")
    a(f"s_mov_b32 s24, {WS_X1}")
    a("buffer_store_dwordx4 v[8:11], v2, s[12:15], s24 offen")
    a.label(f"{name}_nox1")
    ln_prologue(8, 12, 3, 4, 40960, 12)
    a("v_lshlrev_b32 v2, 4, v0")
    a("ds_write_b128 v2, v[8:11]")
    a("s_waitcnt lgkmcnt(0)")
    a("s_barrier")
    a("v_lshrrev_b32 v2, 5, v0")
    a("v_add_lshl_u32 v2, s22, v2, 2")
    for b in range(2):
        for it in range(4):
            a(f"ds_read_b32 v{80+b*4+it}, v2 offset:{(b*512+8*it)*4}")
    for i in range(32):
        a(f"v_mov_b32 v{96+i}, 0")
    a("s_waitcnt lgkmcnt(0)")
    for m in range(2):
        for it in range(4):
            for q in range(4):
                src = 32 + 16 * m + 4 * it + q
                a(f"v_lshlrev_b32 v12, 16, v{src}")
                a(f"v_and_b32 v13, 0xffff0000, v{src}")
                for b in range(2):
                    a(f"v_fmac_f32 v{96+m*16+b*8+2*q}, v12, v{80+b*4+it}")
                    a(f"v_fmac_f32 v{96+m*16+b*8+2*q+1}, v13, v{80+b*4+it}")
    a("v_lshrrev_b32 v2, 5, v0")
    a("v_lshlrev_b32 v2, 12, v2")
    a("v_and_b32 v3, 31, v0")
    a("v_lshl_add_u32 v2, v3, 5, v2")
    for mb in range(4):
        a(f"ds_write_b128 v2, v[{96+mb*8}:{99+mb*8}] offset:{4096+mb*1024}")
        a(f"ds_write_b128 v2, v[{100+mb*8}:{103+mb*8}] offset:{4096+mb*1024+16}")
    a("s_waitcnt lgkmcnt(0)")
    a("s_barrier")
    a("v_lshlrev_b32 v2, 2, v0")
    for mb in range(4):
        for r in range(8):
            a(f"ds_read_b32 v{32+mb*8+r}, v2 offset:{4096+r*4096+mb*1024}")
    a("s_waitcnt lgkmcnt(0)")
    for mb in range(4):
        for r in range(1, 8):
            a(f"v_add_f32 v{32+mb*8}, v{32+mb*8}, v{32+mb*8+r}")
    a("s_lshl_b32 s23, s21, 10")
    for mb in range(4):
        a(f"s_add_u32 s24, s23, {WS_ACC_GU + mb*1792*4}")
        a(f"buffer_atomic_add_f32 v{32+mb*8}, v2, s[12:15], s24 offen")
    a.label(f"{name}_end")
    a("s_endpgm")
    kernel_end(name, 128)


def dn_kernel(name):
    kernel_begin(name)
    a("s_cmp_ge_u32 s2, 56")
    a(f"s_cbranch_scc1 {name}_end")
    load_ptr(8, KA_WD)
    load_ptr(12, KA_WS)
    load_ptr(16, KA_OUT)
    load_ptr(4, KA_DBG)
    a("s_waitcnt lgkmcnt(0)")
    fin_srd(8, 1792 * 1024)
    fin_srd(12, WS_BYTES)
    fin_srd(16, 2048)
    fin_srd(4, 256)
    a("v_lshrrev_b32 v1, 6, v0")
    a("v_lshlrev_b32 v1, 13, v1")
    a("v_and_b32 v2, 63, v0")
    a("v_lshl_add_u32 v1, v2, 4, v1")
    a("s_lshl_b32 s20, s2, 15")
    a("s_add_u32 s21, s20, 4096")
    for it in range(8):
        a(f"buffer_load_dwordx4 v[{32+4*it}:{35+4*it}], v1, s[8:11], s{20 if it < 4 else 21} offen offset:{(it%4)*1024}")
    a("v_lshrrev_b32 v3, 5, v0")
    a("v_mul_u32_u24 v3, 7168, v3")
    a("v_and_b32 v4, 31, v0")
    a("v_lshl_add_u32 v3, v4, 2, v3")
    a("s_lshl_b32 s22, s2, 7")
    a(f"s_add_u32 s23, s22, {WS_ACC_GU + 2*1792*4}")
    a(f"s_add_u32 s22, s22, {WS_ACC_GU}")
    a("v_cmp_gt_u32 vcc, 64, v0")
    a("s_and_saveexec_b64 s[24:25], vcc")
    a("buffer_load_dword v5, v3, s[12:15], s22 offen")
    a("buffer_load_dword v6, v3, s[12:15], s23 offen")
    a("s_waitcnt vmcnt(0)")
    rne(5)
    rne(6)
    a("v_mul_f32 v5, v5, v6")
    rne(5)
    a("v_lshlrev_b32 v4, 2, v0")
    a("ds_write_b32 v4, v5")
    a("s_mov_b64 exec, s[24:25]")
    a("s_waitcnt lgkmcnt(0)")
    a("s_barrier")
    a("v_lshrrev_b32 v10, 6, v0")
    a("v_lshlrev_b32 v10, 5, v10")
    for b in range(2):
        for it in range(8):
            a(f"ds_read_b32 v{80+b*8+it}, v10 offset:{b*128+it*4}")
    for i in range(16):
        a(f"v_mov_b32 v{96+i}, 0")
    a("s_waitcnt vmcnt(0) lgkmcnt(0)")
    for it in range(8):
        for q in range(4):
            src = 32 + 4 * it + q
            a(f"v_lshlrev_b32 v12, 16, v{src}")
            a(f"v_and_b32 v13, 0xffff0000, v{src}")
            for b in range(2):
                a(f"v_fmac_f32 v{96+b*8+2*q}, v12, v{80+b*8+it}")
                a(f"v_fmac_f32 v{96+b*8+2*q+1}, v13, v{80+b*8+it}")
    a("v_lshrrev_b32 v10, 6, v0")
    a("v_lshlrev_b32 v10, 12, v10")
    a("v_lshl_add_u32 v10, v2, 5, v10")
    for b in range(2):
        a(f"ds_write_b128 v10, v[{96+b*8}:{99+b*8}] offset:{4096+b*2048}")
        a(f"ds_write_b128 v10, v[{100+b*8}:{103+b*8}] offset:{4096+b*2048+16}")
    a("s_waitcnt lgkmcnt(0)")
    a("s_barrier")
    a("v_lshlrev_b32 v10, 2, v0")
    for k in range(4):
        for w in range(4):
            a(f"ds_read_b32 v{32+k*4+w}, v10 offset:{4096+w*4096+k*1024}")
    a("s_waitcnt lgkmcnt(0)")
    for k in range(4):
        for w in range(1, 4):
            a(f"v_add_f32 v{32+k*4}, v{32+k*4}, v{32+k*4+w}")
    for k in range(4):
        a(f"s_mov_b32 s20, {WS_ACC_DN + k*1024}")
        a(f"buffer_atomic_add_f32 v{32+k*4}, v10, s[12:15], s20 offen")
    a("s_waitcnt vmcnt(0)")
    a("s_barrier")
    a("v_mov_b32 v11, 1")
    a("v_mov_b32 v12, 0")
    a("v_cmp_eq_u32 vcc, 0, v0")
    a("s_and_saveexec_b64 s[24:25], vcc")
    a("buffer_atomic_add v11, v12, s[4:7], 0 offen sc0")
    a("s_waitcnt vmcnt(0)")
    a("v_lshlrev_b32 v13, 0, v11")
    a("ds_write_b32 v12, v13")
    a("s_mov_b64 exec, s[24:25]")
    a("s_waitcnt lgkmcnt(0)")
    a("s_barrier")
    a("ds_read_b32 v13, v12")
    a("s_waitcnt lgkmcnt(0)")
    a("s_nop 0")
    a("v_readfirstlane_b32 s26, v13")
    a("s_cmp_lg_u32 s26, 55")
    a(f"s_cbranch_scc1 {name}_end")
    a("v_lshlrev_b32 v2, 4, v0")
    a(f"s_mov_b32 s20, {WS_ACC_DN}")
    a("buffer_load_dwordx4 v[24:27], v2, s[12:15], s20 offen sc1")
    a(f"s_mov_b32 s20, {WS_X1}")
    a("buffer_load_dwordx4 v[8:11], v2, s[12:15], s20 offen")
    a("v_lshrrev_b32 v3, 7, v0")
    a("v_mul_u32_u24 v3, 12288, v3")
    a("v_and_b32 v6, 127, v0")
    a("v_lshl_add_u32 v3, v6, 4, v3")
    a(f"s_mov_b32 s21, {WS_MOD + 5*2048}")
    a(f"buffer_load_dwordx4 v[28:31], v3, s[12:15], s21 offen")
    a("s_waitcnt vmcnt(0)")
    for i in range(4):
        rne(24 + i)
        a(f"v_mul_f32 v{24+i}, v{24+i}, v{28+i}")
        rne(24 + i)
        a(f"v_add_f32 v{8+i}, v{8+i}, v{24+i}")
    a("v_cvt_pk_bf16_f32 v8, v8, v9")
    a("v_cvt_pk_bf16_f32 v9, v10, v11")
    a("v_lshlrev_b32 v2, 3, v0")
    a("buffer_store_dwordx2 v[8:9], v2, s[16:19], 0 offen")
    a.label(f"{name}_end")
    a("s_endpgm")
    kernel_end(name, 112)


def main():
    hdr = []
    for line in open(REF):
        if line.startswith("; @launch"):
            break
        if line.startswith("; Override") or line.startswith("; grid="):
            continue
        hdr.append(line.rstrip("\n"))
    launches = [
        ("k0_mod_kernel", 96, 256, 21504),
        ("k1_q_kernel", 128, 256, 21504),
        ("k2_attn_kernel", 512, 256, 33280),
        ("k3_wo_kernel", 64, 512, 36864),
        ("k4_gu_kernel", 112, 256, 41024),
        ("k5_dn_kernel", 56, 256, 20480),
    ]
    for n, g, b, l in launches:
        hdr.append(f"; @launch kernel={n} grid=({g},1,1) block=({b},1,1) lds={l}")
    hdr.append('.amdgcn_target "amdgcn-amd-amdhsa--gfx950"')
    hdr.append(".text")
    gemv_nsplit("k0_mod_kernel", "mod")
    gemv_nsplit("k1_q_kernel", "q")
    attn_kernel("k2_attn_kernel")
    wo_kernel("k3_wo_kernel")
    gu_kernel("k4_gu_kernel")
    dn_kernel("k5_dn_kernel")
    tail = ['.section .rodata,"a"']
    for n, v, s in KERNELS:
        nv = (v + 7) // 8 * 8
        tail += [".p2align 6", f".amdhsa_kernel {n}",
                 f"  .amdhsa_next_free_vgpr {nv}",
                 f"  .amdhsa_next_free_sgpr {s}",
                 f"  .amdhsa_accum_offset {nv}",
                 "  .amdhsa_group_segment_fixed_size 0",
                 "  .amdhsa_kernarg_size 112",
                 "  .amdhsa_user_sgpr_count 2",
                 "  .amdhsa_user_sgpr_kernarg_segment_ptr 1",
                 "  .amdhsa_system_sgpr_workgroup_id_x 1",
                 ".end_amdhsa_kernel"]
    open(OUT, "w").write("\n".join(hdr + a.lines + tail) + "\n")


main()
```

```python
import sys

import os
REF = "adaLN_cond__gqa_block_cached__glu_gated_bilinear__decode.s.ref"
OUT = os.environ.get("GEN_OUT", REF[:-4])
ENV = lambda k, d: type(d)(os.environ.get(k, d))

KA_X, KA_K, KA_V, KA_WQ, KA_WO, KA_BX, KA_WG, KA_WU, KA_WD, KA_C, KA_WMOD, KA_OUT, KA_DBG, KA_WS = [8 * i for i in range(14)]

WS_MOD = 0
WS_Q = 32768
WS_X1 = 49152
WS_ACC = 65536
WS_ACC_WO = 65536
WS_ACC_DN = 69632
WS_ACC_GU = 73728
WS_ACC_END = 102400
WS_PM = 131072
WS_PL = 139264
WS_PO = 262144
WS_BYTES = 0x20000000

SCALE_C = 1.4426950408889634 / (128 ** 0.5)

import struct


def f32hex(x):
    return "0x%08x" % struct.unpack("<I", struct.pack("<f", x))[0]


class Asm:
    def __init__(self):
        self.lines = []

    def __call__(self, s):
        self.lines.append("    " + s)

    def label(self, s):
        self.lines.append(s + ":")

    def raw(self, s):
        self.lines.append(s)


a = Asm()
KERNELS = []


def kernel_begin(name):
    a.raw(f".globl {name}")
    a.raw(".p2align 8")
    a.raw(f".type {name},@function")
    a.label(name)


def kernel_end(name, vgprs, sgprs=96):
    KERNELS.append((name, vgprs, sgprs))


def load_ptr(dst, off):
    a(f"s_load_dwordx2 s[{dst}:{dst+1}], s[0:1], {off}")


def fin_srd(dst, nbytes):
    a(f"s_mov_b32 s{dst+2}, {nbytes}")
    a(f"s_mov_b32 s{dst+3}, 0x00020000")


def rne(v, tmp=None):
    t = v if tmp is None else tmp
    a(f"v_cvt_pk_bf16_f32 v{t}, v{v}, v{v}")
    a(f"v_lshlrev_b32 v{v}, 16, v{t}")


def wave_sum_to_sgpr(v, s, op="add"):
    opn = {"add": "v_add_f32", "max": "v_max_f32"}[op]
    for ctl in ["quad_perm:[1,0,3,2]", "quad_perm:[2,3,0,1]", "row_half_mirror", "row_mirror"]:
        a("s_nop 1")
        a(f"{opn}_dpp v{v}, v{v}, v{v} {ctl} row_mask:0xf bank_mask:0xf")
    a("s_nop 1")
    a(f"{opn}_dpp v{v}, v{v}, v{v} row_bcast:15 row_mask:0xa bank_mask:0xf")
    a("s_nop 1")
    a(f"{opn}_dpp v{v}, v{v}, v{v} row_bcast:31 row_mask:0xc bank_mask:0xf")
    a("s_nop 1")
    a(f"v_readlane_b32 s{s}, v{v}, 63")


def ln_prologue(xv, srd_ws, mod_shift, mod_scale, lds_red, vt):
    a(f"v_lshrrev_b32 v{vt}, 7, v0")
    a(f"v_mul_u32_u24 v{vt}, 12288, v{vt}")
    a(f"v_and_b32 v{vt+1}, 127, v0")
    a(f"v_lshl_add_u32 v{vt}, v{vt+1}, 4, v{vt}")
    a(f"s_mov_b32 s42, {WS_MOD + mod_shift*2048}")
    a(f"s_mov_b32 s43, {WS_MOD + mod_scale*2048}")
    a(f"buffer_load_dwordx4 v[{vt+4}:{vt+7}], v{vt}, s[{srd_ws}:{srd_ws+3}], s42 offen")
    a(f"buffer_load_dwordx4 v[{vt+8}:{vt+11}], v{vt}, s[{srd_ws}:{srd_ws+3}], s43 offen")
    a(f"v_add_f32 v{vt}, v{xv}, v{xv+1}")
    a(f"v_add_f32 v{vt+1}, v{xv+2}, v{xv+3}")
    a(f"v_add_f32 v{vt}, v{vt}, v{vt+1}")
    wave_sum_to_sgpr(vt, 40)
    a(f"v_lshrrev_b32 v{vt+1}, 6, v0")
    a(f"v_lshlrev_b32 v{vt+1}, 2, v{vt+1}")
    a(f"v_mov_b32 v{vt}, s40")
    a(f"ds_write_b32 v{vt+1}, v{vt} offset:{lds_red}")
    a("s_waitcnt lgkmcnt(0)")
    a("s_barrier")
    a(f"v_lshrrev_b32 v{vt+1}, 7, v0")
    a(f"v_lshlrev_b32 v{vt+1}, 3, v{vt+1}")
    a(f"ds_read_b64 v[{vt+2}:{vt+3}], v{vt+1} offset:{lds_red}")
    a("s_waitcnt lgkmcnt(0)")
    a(f"v_add_f32 v{vt+2}, v{vt+2}, v{vt+3}")
    a(f"v_mul_f32 v{vt+2}, {f32hex(1.0/512)}, v{vt+2}")
    for i in range(4):
        a(f"v_sub_f32 v{vt+3}, v{xv+i}, v{vt+2}")
        if i == 0:
            a(f"v_mul_f32 v{vt}, v{vt+3}, v{vt+3}")
        else:
            a(f"v_fmac_f32 v{vt}, v{vt+3}, v{vt+3}")
    wave_sum_to_sgpr(vt, 41)
    a(f"v_lshrrev_b32 v{vt+1}, 6, v0")
    a(f"v_lshlrev_b32 v{vt+1}, 2, v{vt+1}")
    a(f"v_mov_b32 v{vt}, s41")
    a(f"ds_write_b32 v{vt+1}, v{vt} offset:{lds_red+16}")
    a("s_waitcnt lgkmcnt(0)")
    a("s_barrier")
    a(f"v_lshrrev_b32 v{vt+1}, 7, v0")
    a(f"v_lshlrev_b32 v{vt+1}, 3, v{vt+1}")
    a(f"ds_read_b64 v[{vt}:{vt+1}], v{vt+1} offset:{lds_red+16}")
    a("s_waitcnt lgkmcnt(0)")
    a(f"v_add_f32 v{vt}, v{vt}, v{vt+1}")
    a(f"v_mul_f32 v{vt}, {f32hex(1.0/512)}, v{vt}")
    rne(vt)
    rne(vt + 2)
    a(f"v_add_f32 v{vt}, {f32hex(1e-5)}, v{vt}")
    rne(vt)
    a(f"v_sqrt_f32 v{vt}, v{vt}")
    a("s_nop 0")
    rne(vt)
    a(f"v_rcp_f32 v{vt}, v{vt}")
    a("s_waitcnt vmcnt(0)")
    for i in range(4):
        a(f"v_sub_f32 v{xv+i}, v{xv+i}, v{vt+2}")
        rne(xv + i)
        a(f"v_mul_f32 v{xv+i}, v{xv+i}, v{vt}")
        rne(xv + i)
        a(f"v_add_f32 v{vt+8+i}, 1.0, v{vt+8+i}")
        rne(vt + 8 + i)
        a(f"v_mul_f32 v{xv+i}, v{xv+i}, v{vt+8+i}")
        rne(xv + i)
        a(f"v_add_f32 v{xv+i}, v{xv+i}, v{vt+4+i}")
        rne(xv + i)


def unpack_x4(src_pair, dst):
    a(f"v_and_b32 v{dst+1}, 0xffff0000, v{src_pair}")
    a(f"v_lshlrev_b32 v{dst}, 16, v{src_pair}")
    a(f"v_and_b32 v{dst+3}, 0xffff0000, v{src_pair+1}")
    a(f"v_lshlrev_b32 v{dst+2}, 16, v{src_pair+1}")


def gemv_nsplit(name, which):
    nwg = 96 if which == "mod" else 128
    row_stride = 6144 if which == "mod" else 8192
    w_bytes = 512 * row_stride
    kernel_begin(name)
    a(f"s_cmp_ge_u32 s2, {nwg}")
    a(f"s_cbranch_scc1 {name}_end")
    load_ptr(8, KA_C if which == "mod" else KA_X)
    load_ptr(12, KA_WMOD if which == "mod" else KA_WQ)
    load_ptr(16, KA_WS)
    a("s_waitcnt lgkmcnt(0)")
    fin_srd(8, 2048)
    fin_srd(12, w_bytes)
    fin_srd(16, WS_BYTES)
    if which == "mod":
        nz = (WS_ACC_END - WS_ACC) // 1024
        a(f"s_cmp_ge_u32 s2, {nz}")
        a(f"s_cbranch_scc1 {name}_nozero")
        a("s_lshl_b32 s21, s2, 10")
        a("v_lshlrev_b32 v3, 2, v0")
        a("v_add_u32 v3, s21, v3")
        a("v_mov_b32 v6, 0")
        a(f"s_mov_b32 s22, {WS_ACC}")
        a("buffer_store_dword v6, v3, s[16:19], s22 offen")
        a.label(f"{name}_nozero")
    a("v_lshlrev_b32 v2, 3, v0")
    a("buffer_load_dwordx2 v[4:5], v2, s[8:11], 0 offen")
    a("v_lshrrev_b32 v1, 2, v0")
    a(f"s_mov_b32 s20, {row_stride}")
    a("v_mul_lo_u32 v1, v1, s20")
    a("v_and_b32 v2, 3, v0")
    a("v_lshl_add_u32 v1, v2, 4, v1")
    a("s_lshl_b32 s21, s2, 6")
    a("v_add_u32 v1, s21, v1")
    for it in range(8):
        a(f"s_mov_b32 s20, {it*64*row_stride}")
        a(f"buffer_load_dwordx4 v[{32+4*it}:{35+4*it}], v1, s[12:15], s20 offen")
    a("s_waitcnt vmcnt(8)")
    unpack_x4(4, 8)
    if which == "mod":
        for i in range(4):
            a(f"v_mul_f32 v12, {f32hex(-1.4426950408889634)}, v{8+i}")
            a("v_exp_f32 v12, v12")
            a("s_nop 0")
            a("v_add_f32 v12, 1.0, v12")
            a("v_rcp_f32 v12, v12")
            a("s_nop 0")
            a(f"v_mul_f32 v{8+i}, v{8+i}, v12")
            rne(8 + i)
    else:
        ln_prologue(8, 16, 0, 1, 20480, 12)
    a("v_lshlrev_b32 v2, 4, v0")
    a("ds_write_b128 v2, v[8:11]")
    a("s_waitcnt lgkmcnt(0)")
    a("s_barrier")
    a("v_lshrrev_b32 v2, 2, v0")
    a("v_lshlrev_b32 v2, 2, v2")
    for b in range(2):
        for it in range(8):
            a(f"ds_read_b32 v{80+b*8+it}, v2 offset:{(b*512+64*it)*4}")
    for i in range(16):
        a(f"v_mov_b32 v{64+i}, 0")
    a("s_waitcnt vmcnt(0) lgkmcnt(0)")
    for it in range(8):
        for q in range(4):
            src = 32 + 4 * it + q
            a(f"v_lshlrev_b32 v12, 16, v{src}")
            a(f"v_and_b32 v13, 0xffff0000, v{src}")
            for b in range(2):
                a(f"v_fmac_f32 v{64+b*8+2*q}, v12, v{80+b*8+it}")
                a(f"v_fmac_f32 v{64+b*8+2*q+1}, v13, v{80+b*8+it}")
    a("v_lshlrev_b32 v2, 6, v0")
    for i in range(4):
        a(f"ds_write_b128 v2, v[{64+4*i}:{67+4*i}] offset:{4096+16*i}")
    a("s_waitcnt lgkmcnt(0)")
    a("s_barrier")
    a("v_and_b32 v2, 63, v0")
    a("v_lshrrev_b32 v3, 5, v2")
    a("v_lshlrev_b32 v3, 5, v3")
    a("v_and_b32 v4, 7, v2")
    a("v_lshl_add_u32 v3, v4, 2, v3")
    a("v_bfe_u32 v4, v2, 3, 2")
    a("v_lshl_add_u32 v3, v4, 6, v3")
    a("v_lshrrev_b32 v4, 6, v0")
    a("v_lshl_add_u32 v3, v4, 12, v3")
    for r in range(16):
        a(f"ds_read_b32 v{32+r}, v3 offset:{4096+r*256}")
    a("s_waitcnt lgkmcnt(0)")
    for r in range(1, 16):
        a(f"v_add_f32 v32, v32, v{32+r}")
    a("v_lshlrev_b32 v3, 2, v0")
    a("ds_write_b32 v3, v32 offset:0")
    a("s_waitcnt lgkmcnt(0)")
    a("s_barrier")
    a("v_cmp_gt_u32 vcc, 64, v0")
    a("s_and_saveexec_b64 s[24:25], vcc")
    a(f"s_cbranch_execz {name}_end")
    for r in range(4):
        a(f"ds_read_b32 v{32+r}, v3 offset:{r*256}")
    a("s_waitcnt lgkmcnt(0)")
    a("v_add_f32 v32, v32, v33")
    a("v_add_f32 v34, v34, v35")
    a("v_add_f32 v32, v32, v34")
    a("v_lshrrev_b32 v4, 5, v0")
    a("v_and_b32 v5, 31, v0")
    a("s_lshl_b32 s21, s2, 5")
    a("v_add_u32 v5, s21, v5")
    if which == "mod":
        rne(32)
        a("v_mul_u32_u24 v4, 3072, v4")
        a("v_add_lshl_u32 v5, v4, v5, 2")
        a(f"buffer_store_dword v32, v5, s[16:19], 0 offen offset:{WS_MOD}")
    else:
        a("v_cvt_pk_bf16_f32 v32, v32, v32")
        a("v_lshlrev_b32 v4, 12, v4")
        a("v_add_lshl_u32 v5, v4, v5, 1")
        a(f"s_mov_b32 s22, {WS_Q}")
        a("buffer_store_short v32, v5, s[16:19], s22 offen")
    a.label(f"{name}_end")
    a("s_endpgm")
    kernel_end(name, 96)


D = ENV("K2_D", 4)
K2_FLAGS = ENV("K2_FLAGS", "nt")
K2_NOCOMP = ENV("K2_NOCOMP", 0)
NT = 16
VQ = 4
VO = 20
VS = 52
VP = 56
VM, VL, VT, VA = 60, 61, 62, 63
VF = 64
VMC = 72
VK = 80
VV = VK + 16 * D


def attn_kernel(name):
    kernel_begin(name)
    a("s_cmp_ge_u32 s2, 512")
    a(f"s_cbranch_scc1 {name}_end")
    load_ptr(4, KA_K)
    load_ptr(8, KA_V)
    load_ptr(12, KA_WS)
    a("v_lshrrev_b32 v3, 6, v0")
    a("s_nop 0")
    a("v_readfirstlane_b32 s16, v3")
    a("s_waitcnt lgkmcnt(0)")
    fin_srd(4, 134217728)
    fin_srd(8, 134217728)
    fin_srd(12, WS_BYTES)
    a("s_lshl_b32 s17, s2, 18")
    a("s_lshl_b32 s18, s16, 16")
    a("s_add_u32 s17, s17, s18")
    a("v_and_b32 v3, 63, v0")
    a("v_and_b32 v1, 15, v3")
    a("v_lshlrev_b32 v1, 8, v1")
    a("v_lshrrev_b32 v2, 4, v3")
    a("v_lshl_add_u32 v1, v2, 4, v1")
    a("v_lshlrev_b32 v2, 10, v2")
    a("v_and_b32 v73, 15, v3")
    a("v_lshl_add_u32 v2, v73, 4, v2")
    def issue_k(t):
        buf = VK + 16 * (t % D)
        a(f"s_add_u32 s18, s17, {t*4096}")
        for j in range(4):
            a(f"buffer_load_dwordx4 v[{buf+4*j}:{buf+4*j+3}], v1, s[4:7], s18 offen offset:{64*j} {K2_FLAGS}")

    def issue_v(t):
        buf = VV + 16 * (t % D)
        a(f"s_add_u32 s19, s17, {t*4096}")
        for j in range(4):
            a(f"buffer_load_dwordx4 v[{buf+4*j}:{buf+4*j+3}], v2, s[8:11], s19 offen offset:{256*j} {K2_FLAGS}")

    a("s_lshr_b32 s20, s2, 5")
    a("s_lshl_b32 s20, s20, 10")
    a(f"s_add_u32 s20, s20, {WS_Q}")
    a("v_and_b32 v73, 15, v3")
    a("v_lshlrev_b32 v74, 8, v73")
    a("v_lshrrev_b32 v75, 4, v3")
    a("v_lshl_add_u32 v74, v75, 4, v74")
    a("v_mov_b32 v75, 0x40000000")
    a("v_cmp_gt_u32 vcc, 4, v73")
    a("s_nop 1")
    a("v_cndmask_b32 v74, v75, v74, vcc")
    for j in range(4):
        a(f"buffer_load_dwordx4 v[{VQ+4*j}:{VQ+4*j+3}], v74, s[12:15], s20 offen offset:{64*j}")
    for t in range(D):
        issue_k(t)
        issue_v(t)
    for i in range(32):
        a(f"v_mov_b32 v{VO+i}, 0")
    a(f"v_mov_b32 v{VM}, 0xff800000")
    a(f"v_mov_b32 v{VL}, 0")
    a(f"s_mov_b32 s21, {f32hex(SCALE_C)}")
    for t in range(NT):
        kb = VK + 16 * (t % D)
        vb = VV + 16 * (t % D)
        after_k = 4 + 8 * (min(NT, t + D) - t - 1)
        a(f"s_waitcnt vmcnt({after_k})")
        a(f"v_mfma_f32_16x16x32_bf16 v[{VS}:{VS+3}], v[{kb}:{kb+3}], v[{VQ}:{VQ+3}], 0")
        for j in range(1, 4):
            a(f"v_mfma_f32_16x16x32_bf16 v[{VS}:{VS+3}], v[{kb+4*j}:{kb+4*j+3}], v[{VQ+4*j}:{VQ+4*j+3}], v[{VS}:{VS+3}]")
        if t + D < NT:
            issue_k(t + D)
            a("s_nop 3")
        else:
            a("s_nop 7")
        a("s_nop 1")
        a(f"v_max3_f32 v{VT}, v{VS}, v{VS+1}, v{VS+2}")
        a(f"v_max3_f32 v{VT}, v{VT}, v{VS+3}, v{VM}")
        a(f"v_cmp_gt_f32 vcc, v{VT}, v{VM}")
        a("s_nop 1")
        a(f"s_cbranch_vccz {name}_nr{t}")
        a(f"v_sub_f32 v{VA}, v{VM}, v{VT}")
        a(f"v_mul_f32 v{VA}, s21, v{VA}")
        a(f"v_exp_f32 v{VA}, v{VA}")
        a(f"v_mov_b32 v{VM}, v{VT}")
        a(f"v_mul_f32 v{VL}, v{VL}, v{VA}")
        a("s_nop 0")
        for h in range(4):
            for e in range(8):
                a(f"v_mul_f32_dpp v{VO+h*8+e}, v{VA}, v{VO+h*8+e} row_newbcast:{h} row_mask:0xf bank_mask:0xf")
        a.label(f"{name}_nr{t}")
        a(f"v_mul_f32 v{VMC}, s21, v{VM}")
        for i in range(4):
            a(f"v_fma_f32 v{VP+i}, v{VS+i}, s21, -v{VMC}")
        for i in range(4):
            a(f"v_exp_f32 v{VP+i}, v{VP+i}")
        after_v = 8 * (min(NT, t + D) - t - 1) + (4 if t + D < NT else 0)
        a(f"s_waitcnt vmcnt({after_v})")
        a(f"v_add_f32 v{VT}, v{VP}, v{VP+1}")
        a(f"v_add_f32 v{VA}, v{VP+2}, v{VP+3}")
        a(f"v_add_f32 v{VL}, v{VL}, v{VT}")
        a(f"v_add_f32 v{VL}, v{VL}, v{VA}")
        for j in range(4):
            for q in range(4):
                a(f"v_lshlrev_b32 v{VF+2*q}, 16, v{vb+4*j+q}")
                a(f"v_and_b32 v{VF+2*q+1}, 0xffff0000, v{vb+4*j+q}")
            for h in range(4):
                for e in range(8):
                    a(f"v_fmac_f32_dpp v{VO+h*8+e}, v{VP+j}, v{VF+e} row_newbcast:{h} row_mask:0xf bank_mask:0xf")
        if t + D < NT:
            issue_v(t + D)
    a("v_lshrrev_b32 v1, 4, v0")
    a("v_lshlrev_b32 v2, 11, v1")
    a("v_and_b32 v3, 15, v0")
    a("v_lshl_add_u32 v2, v3, 5, v2")
    for h in range(4):
        a(f"ds_write_b128 v2, v[{VO+h*8}:{VO+h*8+3}] offset:{h*512}")
        a(f"ds_write_b128 v2, v[{VO+h*8+4}:{VO+h*8+7}] offset:{h*512+16}")
    a("v_lshlrev_b32 v2, 5, v1")
    a("v_lshl_add_u32 v2, v3, 3, v2")
    a("v_cmp_gt_u32 vcc, 4, v3")
    a("s_and_saveexec_b64 s[24:25], vcc")
    a(f"ds_write_b64 v2, v[{VM}:{VL}] offset:32768")
    a("s_mov_b64 exec, s[24:25]")
    a("s_waitcnt lgkmcnt(0)")
    a("s_barrier")
    a("v_lshrrev_b32 v1, 6, v0")
    a("v_lshlrev_b32 v2, 3, v1")
    for s in range(16):
        a(f"ds_read_b64 v[{80+2*s}:{81+2*s}], v2 offset:{32768+s*32}")
    a("v_and_b32 v3, 63, v0")
    a("v_lshlrev_b32 v3, 3, v3")
    a("v_lshl_add_u32 v3, v1, 9, v3")
    for s in range(16):
        a(f"ds_read_b64 v[{120+2*s}:{121+2*s}], v3 offset:{s*2048}")
    a("s_waitcnt lgkmcnt(0)")
    a("v_max_f32 v4, v80, v82")
    for s in range(2, 16):
        a(f"v_max_f32 v4, v4, v{80+2*s}")
    a("v_mov_b32 v5, 0")
    a("v_mov_b32 v6, 0")
    a("v_mov_b32 v7, 0")
    for s in range(16):
        a(f"v_sub_f32 v8, v{80+2*s}, v4")
        a("v_mul_f32 v8, s21, v8")
        a("v_exp_f32 v8, v8")
        a("s_nop 0")
        a(f"v_fmac_f32 v5, v8, v{81+2*s}")
        a(f"v_fmac_f32 v6, v8, v{120+2*s}")
        a(f"v_fmac_f32 v7, v8, v{121+2*s}")
    a("s_lshl_b32 s20, s2, 11")
    a(f"s_add_u32 s20, s20, {WS_PO}")
    a("buffer_store_dwordx2 v[6:7], v3, s[12:15], s20 offen")
    a("v_and_b32 v9, 63, v0")
    a("v_cmp_eq_u32 vcc, 0, v9")
    a("s_and_saveexec_b64 s[24:25], vcc")
    a("s_lshr_b32 s20, s2, 5")
    a("s_lshl_b32 s20, s20, 9")
    a("s_and_b32 s22, s2, 31")
    a("s_lshl_b32 s22, s22, 2")
    a("s_add_u32 s20, s20, s22")
    a(f"s_add_u32 s22, s20, {WS_PL}")
    a(f"s_add_u32 s20, s20, {WS_PM}")
    a("v_lshlrev_b32 v1, 7, v1")
    a("buffer_store_dword v4, v1, s[12:15], s20 offen")
    a("buffer_store_dword v5, v1, s[12:15], s22 offen")
    a.label(f"{name}_end")
    a("s_endpgm")
    kernel_end(name, VV + 16 * D)


def wo_kernel(name):
    kernel_begin(name)
    a("s_cmp_ge_u32 s2, 64")
    a(f"s_cbranch_scc1 {name}_end")
    load_ptr(8, KA_WO)
    load_ptr(12, KA_WS)
    a("s_waitcnt lgkmcnt(0)")
    fin_srd(8, 4194304)
    fin_srd(12, WS_BYTES)
    a("v_lshrrev_b32 v1, 6, v0")
    a("v_lshlrev_b32 v1, 13, v1")
    a("v_and_b32 v2, 63, v0")
    a("v_lshl_add_u32 v1, v2, 4, v1")
    a("s_lshl_b32 s20, s2, 16")
    a("s_add_u32 s21, s20, 4096")
    for it in range(8):
        a(f"buffer_load_dwordx4 v[{32+4*it}:{35+4*it}], v1, s[8:11], s{20 if it < 4 else 21} offen offset:{(it%4)*1024}")
    a("s_lshr_b32 s22, s2, 1")
    a("s_lshr_b32 s23, s22, 2")
    a("s_and_b32 s24, s22, 3")
    a("s_lshl_b32 s25, s23, 9")
    a("s_lshl_b32 s26, s24, 7")
    a("s_add_u32 s25, s25, s26")
    a("v_lshrrev_b32 v3, 8, v0")
    a("v_lshlrev_b32 v4, 12, v3")
    a(f"s_add_u32 s26, s25, {WS_PM}")
    a(f"s_add_u32 s27, s25, {WS_PL}")
    for i in range(8):
        a(f"buffer_load_dwordx4 v[{64+4*i}:{67+4*i}], v4, s[12:15], s26 offen offset:{16*i}")
    for i in range(8):
        a(f"buffer_load_dwordx4 v[{96+4*i}:{99+4*i}], v4, s[12:15], s27 offen offset:{16*i}")
    a("s_lshl_b32 s25, s23, 16")
    a("s_lshl_b32 s26, s24, 9")
    a("s_add_u32 s25, s25, s26")
    a("s_and_b32 s26, s2, 1")
    a("s_lshl_b32 s26, s26, 8")
    a("s_add_u32 s25, s25, s26")
    a(f"s_add_u32 s25, s25, {WS_PO}")
    a("v_lshlrev_b32 v5, 19, v3")
    a("v_bfe_u32 v6, v0, 6, 2")
    a("v_lshl_add_u32 v5, v6, 14, v5")
    a("v_lshl_add_u32 v5, v2, 2, v5")
    for i in range(8):
        a(f"s_add_u32 s26, s25, {i*2048}")
        a(f"buffer_load_dword v{128+i}, v5, s[12:15], s26 offen")
    a(f"s_mov_b32 s28, {f32hex(SCALE_C)}")
    a("s_waitcnt vmcnt(8)")
    a("v_max_f32 v7, v64, v65")
    for s in range(2, 32):
        a(f"v_max_f32 v7, v7, v{64+s}")
    a("v_mov_b32 v8, 0")
    for s in range(32):
        a(f"v_sub_f32 v{64+s}, v{64+s}, v7")
        a(f"v_mul_f32 v{64+s}, s28, v{64+s}")
        a(f"v_exp_f32 v{64+s}, v{64+s}")
        a("s_nop 0")
        a(f"v_fmac_f32 v8, v{64+s}, v{96+s}")
    for i in range(8):
        a(f"v_mov_b32 v{136+i}, v{64+i}")
    for sq in range(1, 4):
        a(f"v_cmp_eq_u32 vcc, {sq}, v6")
        a("s_nop 1")
        for i in range(8):
            a(f"v_cndmask_b32 v{136+i}, v{136+i}, v{64+sq*8+i}, vcc")
    a("s_waitcnt vmcnt(0)")
    a("v_mul_f32 v9, v136, v128")
    for i in range(1, 8):
        a(f"v_fmac_f32 v9, v{136+i}, v{128+i}")
    a("v_lshlrev_b32 v10, 2, v0")
    a("ds_write_b32 v10, v9")
    a("s_waitcnt lgkmcnt(0)")
    a("s_barrier")
    a("v_lshlrev_b32 v10, 10, v3")
    a("v_lshl_add_u32 v10, v2, 2, v10")
    a("ds_read_b32 v11, v10 offset:0")
    a("ds_read_b32 v12, v10 offset:256")
    a("ds_read_b32 v13, v10 offset:512")
    a("ds_read_b32 v14, v10 offset:768")
    a("v_rcp_f32 v8, v8")
    a("s_waitcnt lgkmcnt(0)")
    a("v_add_f32 v11, v11, v12")
    a("v_add_f32 v13, v13, v14")
    a("v_add_f32 v11, v11, v13")
    a("v_mul_f32 v11, v11, v8")
    rne(11)
    a("v_lshlrev_b32 v10, 8, v3")
    a("v_lshl_add_u32 v10, v2, 2, v10")
    a("ds_write_b32 v10, v11 offset:2048")
    a("s_waitcnt lgkmcnt(0)")
    a("s_barrier")
    a("v_lshrrev_b32 v10, 6, v0")
    a("v_lshlrev_b32 v10, 5, v10")
    for b in range(2):
        for it in range(8):
            a(f"ds_read_b32 v{144+b*8+it}, v10 offset:{2048+b*256+it*4}")
    for i in range(16):
        a(f"v_mov_b32 v{160+i}, 0")
    a("s_waitcnt lgkmcnt(0)")
    for it in range(8):
        for q in range(4):
            src = 32 + 4 * it + q
            a(f"v_lshlrev_b32 v12, 16, v{src}")
            a(f"v_and_b32 v13, 0xffff0000, v{src}")
            for b in range(2):
                a(f"v_fmac_f32 v{160+b*8+2*q}, v12, v{144+b*8+it}")
                a(f"v_fmac_f32 v{160+b*8+2*q+1}, v13, v{144+b*8+it}")
    a("v_lshrrev_b32 v10, 6, v0")
    a("v_lshlrev_b32 v10, 12, v10")
    a("v_lshl_add_u32 v10, v2, 5, v10")
    for b in range(2):
        a(f"ds_write_b128 v10, v[{160+b*8}:{163+b*8}] offset:{4096+b*2048}")
        a(f"ds_write_b128 v10, v[{164+b*8}:{167+b*8}] offset:{4096+b*2048+16}")
    a("s_waitcnt lgkmcnt(0)")
    a("s_barrier")
    a("v_lshlrev_b32 v10, 2, v0")
    for b in range(2):
        for w in range(8):
            a(f"ds_read_b32 v{32+b*8+w}, v10 offset:{4096+w*4096+b*2048}")
    a("s_waitcnt lgkmcnt(0)")
    for b in range(2):
        for w in range(1, 8):
            a(f"v_add_f32 v{32+b*8}, v{32+b*8}, v{32+b*8+w}")
    a(f"s_mov_b32 s20, {WS_ACC_WO}")
    a(f"s_mov_b32 s21, {WS_ACC_WO+2048}")
    a("buffer_atomic_add_f32 v32, v10, s[12:15], s20 offen")
    a("buffer_atomic_add_f32 v40, v10, s[12:15], s21 offen")
    a.label(f"{name}_end")
    a("s_endpgm")
    kernel_end(name, 176)


def gu_kernel(name):
    kernel_begin(name)
    a("s_cmp_ge_u32 s2, 112")
    a(f"s_cbranch_scc1 {name}_end")
    load_ptr(4, KA_X)
    load_ptr(8, KA_WG)
    load_ptr(16, KA_WU)
    load_ptr(12, KA_WS)
    a("s_waitcnt lgkmcnt(0)")
    fin_srd(4, 2048)
    fin_srd(8, 512 * 3584)
    fin_srd(16, 512 * 3584)
    fin_srd(12, WS_BYTES)
    a("s_mul_i32 s20, s2, 9363")
    a("s_lshr_b32 s20, s20, 16")
    a("s_mul_i32 s21, s20, 7")
    a("s_sub_u32 s21, s2, s21")
    a("s_lshl_b32 s22, s20, 5")
    a("v_lshrrev_b32 v1, 5, v0")
    a("v_add_u32 v1, s22, v1")
    a("s_movk_i32 s23, 3584")
    a("v_mul_lo_u32 v1, v1, s23")
    a("v_and_b32 v2, 31, v0")
    a("v_lshl_add_u32 v1, v2, 4, v1")
    a("s_lshl_b32 s23, s21, 9")
    a("v_add_u32 v1, s23, v1")
    for it in range(4):
        a(f"s_mov_b32 s24, {it*8*3584}")
        a(f"buffer_load_dwordx4 v[{32+4*it}:{35+4*it}], v1, s[8:11], s24 offen")
        a(f"buffer_load_dwordx4 v[{48+4*it}:{51+4*it}], v1, s[16:19], s24 offen")
    a("v_lshlrev_b32 v2, 3, v0")
    a("buffer_load_dwordx2 v[4:5], v2, s[4:7], 0 offen")
    a("v_lshlrev_b32 v2, 4, v0")
    a(f"s_mov_b32 s24, {WS_ACC_WO}")
    a("buffer_load_dwordx4 v[24:27], v2, s[12:15], s24 offen")
    a("v_lshrrev_b32 v3, 7, v0")
    a("v_mul_u32_u24 v3, 12288, v3")
    a("v_and_b32 v6, 127, v0")
    a("v_lshl_add_u32 v3, v6, 4, v3")
    a(f"s_mov_b32 s25, {WS_MOD + 2*2048}")
    a(f"buffer_load_dwordx4 v[28:31], v3, s[12:15], s25 offen")
    a("s_waitcnt vmcnt(0)")
    unpack_x4(4, 8)
    for i in range(4):
        rne(24 + i)
        a(f"v_mul_f32 v{24+i}, v{24+i}, v{28+i}")
        rne(24 + i)
        a(f"v_add_f32 v{8+i}, v{8+i}, v{24+i}")
        rne(8 + i)
    a("s_cmp_lg_u32 s2, 0")
    a(f"s_cbranch_scc1 {name}_nox1")
    a(f"s_mov_b32 s24, {WS_X1}")
    a("buffer_store_dwordx4 v[8:11], v2, s[12:15], s24 offen")
    a.label(f"{name}_nox1")
    ln_prologue(8, 12, 3, 4, 40960, 12)
    a("v_lshlrev_b32 v2, 4, v0")
    a("ds_write_b128 v2, v[8:11]")
    a("s_waitcnt lgkmcnt(0)")
    a("s_barrier")
    a("v_lshrrev_b32 v2, 5, v0")
    a("v_add_lshl_u32 v2, s22, v2, 2")
    for b in range(2):
        for it in range(4):
            a(f"ds_read_b32 v{80+b*4+it}, v2 offset:{(b*512+8*it)*4}")
    for i in range(32):
        a(f"v_mov_b32 v{96+i}, 0")
    a("s_waitcnt lgkmcnt(0)")
    for m in range(2):
        for it in range(4):
            for q in range(4):
                src = 32 + 16 * m + 4 * it + q
                a(f"v_lshlrev_b32 v12, 16, v{src}")
                a(f"v_and_b32 v13, 0xffff0000, v{src}")
                for b in range(2):
                    a(f"v_fmac_f32 v{96+m*16+b*8+2*q}, v12, v{80+b*4+it}")
                    a(f"v_fmac_f32 v{96+m*16+b*8+2*q+1}, v13, v{80+b*4+it}")
    a("v_lshrrev_b32 v2, 5, v0")
    a("v_lshlrev_b32 v2, 12, v2")
    a("v_and_b32 v3, 31, v0")
    a("v_lshl_add_u32 v2, v3, 5, v2")
    for mb in range(4):
        a(f"ds_write_b128 v2, v[{96+mb*8}:{99+mb*8}] offset:{4096+mb*1024}")
        a(f"ds_write_b128 v2, v[{100+mb*8}:{103+mb*8}] offset:{4096+mb*1024+16}")
    a("s_waitcnt lgkmcnt(0)")
    a("s_barrier")
    a("v_lshlrev_b32 v2, 2, v0")
    for mb in range(4):
        for r in range(8):
            a(f"ds_read_b32 v{32+mb*8+r}, v2 offset:{4096+r*4096+mb*1024}")
    a("s_waitcnt lgkmcnt(0)")
    for mb in range(4):
        for r in range(1, 8):
            a(f"v_add_f32 v{32+mb*8}, v{32+mb*8}, v{32+mb*8+r}")
    a("s_lshl_b32 s23, s21, 10")
    for mb in range(4):
        a(f"s_add_u32 s24, s23, {WS_ACC_GU + mb*1792*4}")
        a(f"buffer_atomic_add_f32 v{32+mb*8}, v2, s[12:15], s24 offen")
    a.label(f"{name}_end")
    a("s_endpgm")
    kernel_end(name, 128)


def dn_kernel(name):
    kernel_begin(name)
    a("s_cmp_ge_u32 s2, 56")
    a(f"s_cbranch_scc1 {name}_end")
    load_ptr(8, KA_WD)
    load_ptr(12, KA_WS)
    load_ptr(16, KA_OUT)
    load_ptr(4, KA_DBG)
    a("s_waitcnt lgkmcnt(0)")
    fin_srd(8, 1792 * 1024)
    fin_srd(12, WS_BYTES)
    fin_srd(16, 2048)
    fin_srd(4, 256)
    a("v_lshrrev_b32 v1, 6, v0")
    a("v_lshlrev_b32 v1, 13, v1")
    a("v_and_b32 v2, 63, v0")
    a("v_lshl_add_u32 v1, v2, 4, v1")
    a("s_lshl_b32 s20, s2, 15")
    a("s_add_u32 s21, s20, 4096")
    for it in range(8):
        a(f"buffer_load_dwordx4 v[{32+4*it}:{35+4*it}], v1, s[8:11], s{20 if it < 4 else 21} offen offset:{(it%4)*1024}")
    a("v_lshrrev_b32 v3, 5, v0")
    a("v_mul_u32_u24 v3, 7168, v3")
    a("v_and_b32 v4, 31, v0")
    a("v_lshl_add_u32 v3, v4, 2, v3")
    a("s_lshl_b32 s22, s2, 7")
    a(f"s_add_u32 s23, s22, {WS_ACC_GU + 2*1792*4}")
    a(f"s_add_u32 s22, s22, {WS_ACC_GU}")
    a("v_cmp_gt_u32 vcc, 64, v0")
    a("s_and_saveexec_b64 s[24:25], vcc")
    a("buffer_load_dword v5, v3, s[12:15], s22 offen")
    a("buffer_load_dword v6, v3, s[12:15], s23 offen")
    a("s_waitcnt vmcnt(0)")
    rne(5)
    rne(6)
    a("v_mul_f32 v5, v5, v6")
    rne(5)
    a("v_lshlrev_b32 v4, 2, v0")
    a("ds_write_b32 v4, v5")
    a("s_mov_b64 exec, s[24:25]")
    a("s_waitcnt lgkmcnt(0)")
    a("s_barrier")
    a("v_lshrrev_b32 v10, 6, v0")
    a("v_lshlrev_b32 v10, 5, v10")
    for b in range(2):
        for it in range(8):
            a(f"ds_read_b32 v{80+b*8+it}, v10 offset:{b*128+it*4}")
    for i in range(16):
        a(f"v_mov_b32 v{96+i}, 0")
    a("s_waitcnt vmcnt(0) lgkmcnt(0)")
    for it in range(8):
        for q in range(4):
            src = 32 + 4 * it + q
            a(f"v_lshlrev_b32 v12, 16, v{src}")
            a(f"v_and_b32 v13, 0xffff0000, v{src}")
            for b in range(2):
                a(f"v_fmac_f32 v{96+b*8+2*q}, v12, v{80+b*8+it}")
                a(f"v_fmac_f32 v{96+b*8+2*q+1}, v13, v{80+b*8+it}")
    a("v_lshrrev_b32 v10, 6, v0")
    a("v_lshlrev_b32 v10, 12, v10")
    a("v_lshl_add_u32 v10, v2, 5, v10")
    for b in range(2):
        a(f"ds_write_b128 v10, v[{96+b*8}:{99+b*8}] offset:{4096+b*2048}")
        a(f"ds_write_b128 v10, v[{100+b*8}:{103+b*8}] offset:{4096+b*2048+16}")
    a("s_waitcnt lgkmcnt(0)")
    a("s_barrier")
    a("v_lshlrev_b32 v10, 2, v0")
    for k in range(4):
        for w in range(4):
            a(f"ds_read_b32 v{32+k*4+w}, v10 offset:{4096+w*4096+k*1024}")
    a("s_waitcnt lgkmcnt(0)")
    for k in range(4):
        for w in range(1, 4):
            a(f"v_add_f32 v{32+k*4}, v{32+k*4}, v{32+k*4+w}")
    for k in range(4):
        a(f"s_mov_b32 s20, {WS_ACC_DN + k*1024}")
        a(f"buffer_atomic_add_f32 v{32+k*4}, v10, s[12:15], s20 offen")
    a("s_waitcnt vmcnt(0)")
    a("s_barrier")
    a("v_mov_b32 v11, 1")
    a("v_mov_b32 v12, 0")
    a("v_cmp_eq_u32 vcc, 0, v0")
    a("s_and_saveexec_b64 s[24:25], vcc")
    a("buffer_atomic_add v11, v12, s[4:7], 0 offen sc0")
    a("s_waitcnt vmcnt(0)")
    a("v_lshlrev_b32 v13, 0, v11")
    a("ds_write_b32 v12, v13")
    a("s_mov_b64 exec, s[24:25]")
    a("s_waitcnt lgkmcnt(0)")
    a("s_barrier")
    a("ds_read_b32 v13, v12")
    a("s_waitcnt lgkmcnt(0)")
    a("s_nop 0")
    a("v_readfirstlane_b32 s26, v13")
    a("s_cmp_lg_u32 s26, 55")
    a(f"s_cbranch_scc1 {name}_end")
    a("v_lshlrev_b32 v2, 4, v0")
    a(f"s_mov_b32 s20, {WS_ACC_DN}")
    a("buffer_load_dwordx4 v[24:27], v2, s[12:15], s20 offen sc1")
    a(f"s_mov_b32 s20, {WS_X1}")
    a("buffer_load_dwordx4 v[8:11], v2, s[12:15], s20 offen")
    a("v_lshrrev_b32 v3, 7, v0")
    a("v_mul_u32_u24 v3, 12288, v3")
    a("v_and_b32 v6, 127, v0")
    a("v_lshl_add_u32 v3, v6, 4, v3")
    a(f"s_mov_b32 s21, {WS_MOD + 5*2048}")
    a(f"buffer_load_dwordx4 v[28:31], v3, s[12:15], s21 offen")
    a("s_waitcnt vmcnt(0)")
    for i in range(4):
        rne(24 + i)
        a(f"v_mul_f32 v{24+i}, v{24+i}, v{28+i}")
        rne(24 + i)
        a(f"v_add_f32 v{8+i}, v{8+i}, v{24+i}")
    a("v_cvt_pk_bf16_f32 v8, v8, v9")
    a("v_cvt_pk_bf16_f32 v9, v10, v11")
    a("v_lshlrev_b32 v2, 3, v0")
    a("buffer_store_dwordx2 v[8:9], v2, s[16:19], 0 offen")
    a.label(f"{name}_end")
    a("s_endpgm")
    kernel_end(name, 112)


def main():
    hdr = []
    for line in open(REF):
        if line.startswith("; @launch"):
            break
        if line.startswith("; Override") or line.startswith("; grid="):
            continue
        hdr.append(line.rstrip("\n"))
    launches = [
        ("k0_mod_kernel", 96, 256, 21504),
        ("k1_q_kernel", 128, 256, 21504),
        ("k2_attn_kernel", 512, 256, 33280),
        ("k3_wo_kernel", 64, 512, 36864),
        ("k4_gu_kernel", 112, 256, 41024),
        ("k5_dn_kernel", 56, 256, 20480),
    ]
    for n, g, b, l in launches:
        hdr.append(f"; @launch kernel={n} grid=({g},1,1) block=({b},1,1) lds={l}")
    hdr.append('.amdgcn_target "amdgcn-amd-amdhsa--gfx950"')
    hdr.append(".text")
    gemv_nsplit("k0_mod_kernel", "mod")
    gemv_nsplit("k1_q_kernel", "q")
    attn_kernel("k2_attn_kernel")
    wo_kernel("k3_wo_kernel")
    gu_kernel("k4_gu_kernel")
    dn_kernel("k5_dn_kernel")
    tail = ['.section .rodata,"a"']
    for n, v, s in KERNELS:
        nv = (v + 7) // 8 * 8
        tail += [".p2align 6", f".amdhsa_kernel {n}",
                 f"  .amdhsa_next_free_vgpr {nv}",
                 f"  .amdhsa_next_free_sgpr {s}",
                 f"  .amdhsa_accum_offset {nv}",
                 "  .amdhsa_group_segment_fixed_size 0",
                 "  .amdhsa_kernarg_size 112",
                 "  .amdhsa_user_sgpr_count 2",
                 "  .amdhsa_user_sgpr_kernarg_segment_ptr 1",
                 "  .amdhsa_system_sgpr_workgroup_id_x 1",
                 ".end_amdhsa_kernel"]
    open(OUT, "w").write("\n".join(hdr + a.lines + tail) + "\n")


main()
```

```python
import sys

import os
REF = "adaLN_cond__gqa_block_cached__glu_gated_bilinear__decode.s.ref"
OUT = os.environ.get("GEN_OUT", REF[:-4])
ENV = lambda k, d: type(d)(os.environ.get(k, d))

KA_X, KA_K, KA_V, KA_WQ, KA_WO, KA_BX, KA_WG, KA_WU, KA_WD, KA_C, KA_WMOD, KA_OUT, KA_DBG, KA_WS = [8 * i for i in range(14)]

WS_MOD = 0
WS_Q = 32768
WS_X1 = 49152
WS_ACC = 65536
WS_ACC_WO = 65536
WS_ACC_DN = 69632
WS_ACC_GU = 73728
WS_ACC_END = 102400
WS_PM = 131072
WS_PL = 139264
WS_PO = 262144
WS_BYTES = 0x20000000

SCALE_C = 1.4426950408889634 / (128 ** 0.5)

import struct


def f32hex(x):
    return "0x%08x" % struct.unpack("<I", struct.pack("<f", x))[0]


class Asm:
    def __init__(self):
        self.lines = []

    def __call__(self, s):
        self.lines.append("    " + s)

    def label(self, s):
        self.lines.append(s + ":")

    def raw(self, s):
        self.lines.append(s)


a = Asm()
KERNELS = []


def kernel_begin(name):
    a.raw(f".globl {name}")
    a.raw(".p2align 8")
    a.raw(f".type {name},@function")
    a.label(name)
    if name[:2] in os.environ.get("EMPTY", "").split(","):
        a("s_endpgm")


def kernel_end(name, vgprs, sgprs=96):
    KERNELS.append((name, vgprs, sgprs))


def load_ptr(dst, off):
    a(f"s_load_dwordx2 s[{dst}:{dst+1}], s[0:1], {off}")


def fin_srd(dst, nbytes):
    a(f"s_mov_b32 s{dst+2}, {nbytes}")
    a(f"s_mov_b32 s{dst+3}, 0x00020000")


def rne(v, tmp=None):
    t = v if tmp is None else tmp
    a(f"v_cvt_pk_bf16_f32 v{t}, v{v}, v{v}")
    a(f"v_lshlrev_b32 v{v}, 16, v{t}")


def wave_sum_to_sgpr(v, s, op="add"):
    opn = {"add": "v_add_f32", "max": "v_max_f32"}[op]
    for ctl in ["quad_perm:[1,0,3,2]", "quad_perm:[2,3,0,1]", "row_half_mirror", "row_mirror"]:
        a("s_nop 1")
        a(f"{opn}_dpp v{v}, v{v}, v{v} {ctl} row_mask:0xf bank_mask:0xf")
    a("s_nop 1")
    a(f"{opn}_dpp v{v}, v{v}, v{v} row_bcast:15 row_mask:0xa bank_mask:0xf")
    a("s_nop 1")
    a(f"{opn}_dpp v{v}, v{v}, v{v} row_bcast:31 row_mask:0xc bank_mask:0xf")
    a("s_nop 1")
    a(f"v_readlane_b32 s{s}, v{v}, 63")


def ln_prologue(xv, srd_ws, mod_shift, mod_scale, lds_red, vt):
    a(f"v_lshrrev_b32 v{vt}, 7, v0")
    a(f"v_mul_u32_u24 v{vt}, 12288, v{vt}")
    a(f"v_and_b32 v{vt+1}, 127, v0")
    a(f"v_lshl_add_u32 v{vt}, v{vt+1}, 4, v{vt}")
    a(f"s_mov_b32 s42, {WS_MOD + mod_shift*2048}")
    a(f"s_mov_b32 s43, {WS_MOD + mod_scale*2048}")
    a(f"buffer_load_dwordx4 v[{vt+4}:{vt+7}], v{vt}, s[{srd_ws}:{srd_ws+3}], s42 offen")
    a(f"buffer_load_dwordx4 v[{vt+8}:{vt+11}], v{vt}, s[{srd_ws}:{srd_ws+3}], s43 offen")
    a(f"v_add_f32 v{vt}, v{xv}, v{xv+1}")
    a(f"v_add_f32 v{vt+1}, v{xv+2}, v{xv+3}")
    a(f"v_add_f32 v{vt}, v{vt}, v{vt+1}")
    wave_sum_to_sgpr(vt, 40)
    a(f"v_lshrrev_b32 v{vt+1}, 6, v0")
    a(f"v_lshlrev_b32 v{vt+1}, 2, v{vt+1}")
    a(f"v_mov_b32 v{vt}, s40")
    a(f"ds_write_b32 v{vt+1}, v{vt} offset:{lds_red}")
    a("s_waitcnt lgkmcnt(0)")
    a("s_barrier")
    a(f"v_lshrrev_b32 v{vt+1}, 7, v0")
    a(f"v_lshlrev_b32 v{vt+1}, 3, v{vt+1}")
    a(f"ds_read_b64 v[{vt+2}:{vt+3}], v{vt+1} offset:{lds_red}")
    a("s_waitcnt lgkmcnt(0)")
    a(f"v_add_f32 v{vt+2}, v{vt+2}, v{vt+3}")
    a(f"v_mul_f32 v{vt+2}, {f32hex(1.0/512)}, v{vt+2}")
    for i in range(4):
        a(f"v_sub_f32 v{vt+3}, v{xv+i}, v{vt+2}")
        if i == 0:
            a(f"v_mul_f32 v{vt}, v{vt+3}, v{vt+3}")
        else:
            a(f"v_fmac_f32 v{vt}, v{vt+3}, v{vt+3}")
    wave_sum_to_sgpr(vt, 41)
    a(f"v_lshrrev_b32 v{vt+1}, 6, v0")
    a(f"v_lshlrev_b32 v{vt+1}, 2, v{vt+1}")
    a(f"v_mov_b32 v{vt}, s41")
    a(f"ds_write_b32 v{vt+1}, v{vt} offset:{lds_red+16}")
    a("s_waitcnt lgkmcnt(0)")
    a("s_barrier")
    a(f"v_lshrrev_b32 v{vt+1}, 7, v0")
    a(f"v_lshlrev_b32 v{vt+1}, 3, v{vt+1}")
    a(f"ds_read_b64 v[{vt}:{vt+1}], v{vt+1} offset:{lds_red+16}")
    a("s_waitcnt lgkmcnt(0)")
    a(f"v_add_f32 v{vt}, v{vt}, v{vt+1}")
    a(f"v_mul_f32 v{vt}, {f32hex(1.0/512)}, v{vt}")
    rne(vt)
    rne(vt + 2)
    a(f"v_add_f32 v{vt}, {f32hex(1e-5)}, v{vt}")
    rne(vt)
    a(f"v_sqrt_f32 v{vt}, v{vt}")
    a("s_nop 0")
    rne(vt)
    a(f"v_rcp_f32 v{vt}, v{vt}")
    a("s_waitcnt vmcnt(0)")
    for i in range(4):
        a(f"v_sub_f32 v{xv+i}, v{xv+i}, v{vt+2}")
        rne(xv + i)
        a(f"v_mul_f32 v{xv+i}, v{xv+i}, v{vt}")
        rne(xv + i)
        a(f"v_add_f32 v{vt+8+i}, 1.0, v{vt+8+i}")
        rne(vt + 8 + i)
        a(f"v_mul_f32 v{xv+i}, v{xv+i}, v{vt+8+i}")
        rne(xv + i)
        a(f"v_add_f32 v{xv+i}, v{xv+i}, v{vt+4+i}")
        rne(xv + i)


def unpack_x4(src_pair, dst):
    a(f"v_and_b32 v{dst+1}, 0xffff0000, v{src_pair}")
    a(f"v_lshlrev_b32 v{dst}, 16, v{src_pair}")
    a(f"v_and_b32 v{dst+3}, 0xffff0000, v{src_pair+1}")
    a(f"v_lshlrev_b32 v{dst+2}, 16, v{src_pair+1}")


def gemv_nsplit(name, which):
    nwg = 96 if which == "mod" else 128
    row_stride = 6144 if which == "mod" else 8192
    w_bytes = 512 * row_stride
    kernel_begin(name)
    a(f"s_cmp_ge_u32 s2, {nwg}")
    a(f"s_cbranch_scc1 {name}_end")
    load_ptr(8, KA_C if which == "mod" else KA_X)
    load_ptr(12, KA_WMOD if which == "mod" else KA_WQ)
    load_ptr(16, KA_WS)
    a("s_waitcnt lgkmcnt(0)")
    fin_srd(8, 2048)
    fin_srd(12, w_bytes)
    fin_srd(16, WS_BYTES)
    if which == "mod":
        nz = (WS_ACC_END - WS_ACC) // 1024
        a(f"s_cmp_ge_u32 s2, {nz}")
        a(f"s_cbranch_scc1 {name}_nozero")
        a("s_lshl_b32 s21, s2, 10")
        a("v_lshlrev_b32 v3, 2, v0")
        a("v_add_u32 v3, s21, v3")
        a("v_mov_b32 v6, 0")
        a(f"s_mov_b32 s22, {WS_ACC}")
        a("buffer_store_dword v6, v3, s[16:19], s22 offen")
        a.label(f"{name}_nozero")
    a("v_lshlrev_b32 v2, 3, v0")
    a("buffer_load_dwordx2 v[4:5], v2, s[8:11], 0 offen")
    a("v_lshrrev_b32 v1, 2, v0")
    a(f"s_mov_b32 s20, {row_stride}")
    a("v_mul_lo_u32 v1, v1, s20")
    a("v_and_b32 v2, 3, v0")
    a("v_lshl_add_u32 v1, v2, 4, v1")
    a("s_lshl_b32 s21, s2, 6")
    a("v_add_u32 v1, s21, v1")
    for it in range(8):
        a(f"s_mov_b32 s20, {it*64*row_stride}")
        a(f"buffer_load_dwordx4 v[{32+4*it}:{35+4*it}], v1, s[12:15], s20 offen {WF}")
    a("s_waitcnt vmcnt(8)")
    unpack_x4(4, 8)
    if which == "mod":
        for i in range(4):
            a(f"v_mul_f32 v12, {f32hex(-1.4426950408889634)}, v{8+i}")
            a("v_exp_f32 v12, v12")
            a("s_nop 0")
            a("v_add_f32 v12, 1.0, v12")
            a("v_rcp_f32 v12, v12")
            a("s_nop 0")
            a(f"v_mul_f32 v{8+i}, v{8+i}, v12")
            rne(8 + i)
    else:
        ln_prologue(8, 16, 0, 1, 20480, 12)
    a("v_lshlrev_b32 v2, 4, v0")
    a("ds_write_b128 v2, v[8:11]")
    a("s_waitcnt lgkmcnt(0)")
    a("s_barrier")
    a("v_lshrrev_b32 v2, 2, v0")
    a("v_lshlrev_b32 v2, 2, v2")
    for b in range(2):
        for it in range(8):
            a(f"ds_read_b32 v{80+b*8+it}, v2 offset:{(b*512+64*it)*4}")
    for i in range(16):
        a(f"v_mov_b32 v{64+i}, 0")
    a("s_waitcnt vmcnt(0) lgkmcnt(0)")
    for it in range(8):
        for q in range(4):
            src = 32 + 4 * it + q
            a(f"v_lshlrev_b32 v12, 16, v{src}")
            a(f"v_and_b32 v13, 0xffff0000, v{src}")
            for b in range(2):
                a(f"v_fmac_f32 v{64+b*8+2*q}, v12, v{80+b*8+it}")
                a(f"v_fmac_f32 v{64+b*8+2*q+1}, v13, v{80+b*8+it}")
    a("v_lshlrev_b32 v2, 6, v0")
    for i in range(4):
        a(f"ds_write_b128 v2, v[{64+4*i}:{67+4*i}] offset:{4096+16*i}")
    a("s_waitcnt lgkmcnt(0)")
    a("s_barrier")
    a("v_and_b32 v2, 63, v0")
    a("v_lshrrev_b32 v3, 5, v2")
    a("v_lshlrev_b32 v3, 5, v3")
    a("v_and_b32 v4, 7, v2")
    a("v_lshl_add_u32 v3, v4, 2, v3")
    a("v_bfe_u32 v4, v2, 3, 2")
    a("v_lshl_add_u32 v3, v4, 6, v3")
    a("v_lshrrev_b32 v4, 6, v0")
    a("v_lshl_add_u32 v3, v4, 12, v3")
    for r in range(16):
        a(f"ds_read_b32 v{32+r}, v3 offset:{4096+r*256}")
    a("s_waitcnt lgkmcnt(0)")
    for r in range(1, 16):
        a(f"v_add_f32 v32, v32, v{32+r}")
    a("v_lshlrev_b32 v3, 2, v0")
    a("ds_write_b32 v3, v32 offset:0")
    a("s_waitcnt lgkmcnt(0)")
    a("s_barrier")
    a("v_cmp_gt_u32 vcc, 64, v0")
    a("s_and_saveexec_b64 s[24:25], vcc")
    a(f"s_cbranch_execz {name}_end")
    for r in range(4):
        a(f"ds_read_b32 v{32+r}, v3 offset:{r*256}")
    a("s_waitcnt lgkmcnt(0)")
    a("v_add_f32 v32, v32, v33")
    a("v_add_f32 v34, v34, v35")
    a("v_add_f32 v32, v32, v34")
    a("v_lshrrev_b32 v4, 5, v0")
    a("v_and_b32 v5, 31, v0")
    a("s_lshl_b32 s21, s2, 5")
    a("v_add_u32 v5, s21, v5")
    if which == "mod":
        rne(32)
        a("v_mul_u32_u24 v4, 3072, v4")
        a("v_add_lshl_u32 v5, v4, v5, 2")
        a(f"buffer_store_dword v32, v5, s[16:19], 0 offen offset:{WS_MOD}")
    else:
        a("v_cvt_pk_bf16_f32 v32, v32, v32")
        a("v_lshlrev_b32 v4, 12, v4")
        a("v_add_lshl_u32 v5, v4, v5, 1")
        a(f"s_mov_b32 s22, {WS_Q}")
        a("buffer_store_short v32, v5, s[16:19], s22 offen")
    a.label(f"{name}_end")
    a("s_endpgm")
    kernel_end(name, 96)


SPIN_MAX = 200000


def wave_reduce16(acc):
    steps = [("quad_perm:[1,0,3,2]", "0xf"), ("quad_perm:[2,3,0,1]", "0xf"), ("row_half_mirror", "0xf"),
             ("row_mirror", "0xf"), ("row_bcast:15", "0xa"), ("row_bcast:31", "0xc")]
    a("s_nop 1")
    for ctl, rm in steps:
        for i in range(16):
            a(f"v_add_f32_dpp v{acc+i}, v{acc+i}, v{acc+i} {ctl} row_mask:{rm} bank_mask:0xf")
        a("s_nop 1")


def publish(cnt_off, lbl):
    a("s_waitcnt vmcnt(0)")
    a("buffer_wbl2 sc1")
    a("s_waitcnt vmcnt(0)")
    a("v_mov_b32 v77, 1")
    a("v_mov_b32 v76, 0")
    a("s_mov_b64 s[24:25], exec")
    a("s_mov_b64 exec, 1")
    a(f"buffer_atomic_add v77, v76, s[36:39], 0 offen offset:{cnt_off}")
    a("s_mov_b64 exec, s[24:25]")


def poll(cnt_off, target, lbl):
    a("v_mov_b32 v76, 0")
    a("s_mov_b32 s26, 0")
    a.label(lbl)
    a(f"buffer_load_dword v77, v76, s[36:39], 0 offen offset:{cnt_off} sc1")
    a("s_waitcnt vmcnt(0)")
    a("v_readfirstlane_b32 s27, v77")
    a(f"s_cmp_ge_u32 s27, {target}")
    a(f"s_cbranch_scc1 {lbl}_ok")
    a("s_sleep 4")
    a("s_add_u32 s26, s26, 1")
    a(f"s_cmp_lt_u32 s26, {SPIN_MAX}")
    a(f"s_cbranch_scc1 {lbl}")
    a.label(f"{lbl}_ok")
    a("buffer_inv sc1")
    a("s_waitcnt vmcnt(0)")


def s0_worker(name):
    load_ptr(28, KA_WMOD)
    load_ptr(32, KA_C)
    a("s_waitcnt lgkmcnt(0)")
    fin_srd(28, 512 * 6144)
    fin_srd(32, 2048)
    a("v_and_b32 v3, 63, v0")
    a("v_mul_u32_u24 v99, 49152, v3")
    a("s_lshl_b32 s20, s2, 4")
    for i in range(8):
        a(f"s_add_u32 s21, s20, {i*6144}")
        a(f"buffer_load_dwordx4 v[{100+4*i}:{103+4*i}], v99, s[28:31], s21 offen nt")
    a("v_lshlrev_b32 v98, 4, v3")
    a("buffer_load_dwordx4 v[92:95], v98, s[32:35], 0 offen")
    a("buffer_load_dwordx4 v[132:135], v98, s[32:35], 0 offen offset:1024")
    a("s_waitcnt vmcnt(0)")
    for b, src in ((0, 92), (1, 132)):
        for q in range(4):
            a(f"v_lshlrev_b32 v{140+b*8+2*q}, 16, v{src+q}")
            a(f"v_and_b32 v{140+b*8+2*q+1}, 0xffff0000, v{src+q}")
    for i in range(16):
        a(f"v_mul_f32 v96, {f32hex(-1.4426950408889634)}, v{140+i}")
        a("v_exp_f32 v96, v96")
        a("s_nop 0")
        a("v_add_f32 v96, 1.0, v96")
        a("v_rcp_f32 v96, v96")
        a("s_nop 0")
        a(f"v_mul_f32 v{140+i}, v{140+i}, v96")
        rne(140 + i)
    gemv8(100, 140, 160)
    for i in range(16):
        rne(160 + i)
    a("s_lshl_b32 s20, s2, 5")
    a(f"s_add_u32 s21, s20, {WS_MOD + 12288}")
    a(f"s_add_u32 s20, s20, {WS_MOD}")
    a("v_mov_b32 v76, 0")
    a("s_mov_b64 s[24:25], exec")
    a("s_mov_b32 exec_lo, 0")
    a("s_mov_b32 exec_hi, 0x80000000")
    a("buffer_store_dwordx4 v[160:163], v76, s[12:15], s20 offen sc1")
    a("buffer_store_dwordx4 v[164:167], v76, s[12:15], s20 offen offset:16 sc1")
    a("buffer_store_dwordx4 v[168:171], v76, s[12:15], s21 offen sc1")
    a("buffer_store_dwordx4 v[172:175], v76, s[12:15], s21 offen offset:16 sc1")
    a("s_mov_b64 exec, s[24:25]")
    a("s_cmp_ge_u32 s2, 128")
    a(f"s_cbranch_scc1 {name}_s0done")
    publish(0, f"{name}_pa")
    a.label(f"{name}_s0done")


def gemv8(wreg, hreg, acc):
    for i in range(16):
        a(f"v_mov_b32 v{acc+i}, 0")
    for i in range(8):
        for q in range(4):
            src = wreg + 4 * i + q
            a(f"v_lshlrev_b32 v96, 16, v{src}")
            a(f"v_and_b32 v97, 0xffff0000, v{src}")
            for b in range(2):
                a(f"v_fmac_f32 v{acc+b*8+2*q}, v96, v{hreg+b*8+i}")
                a(f"v_fmac_f32 v{acc+b*8+2*q+1}, v97, v{hreg+b*8+i}")
    wave_reduce16(acc)


def s1_worker(name):
    load_ptr(28, KA_WQ)
    load_ptr(32, KA_X)
    a("s_waitcnt lgkmcnt(0)")
    fin_srd(28, 512 * 8192)
    fin_srd(32, 2048)
    a("v_and_b32 v3, 63, v0")
    a("v_lshlrev_b32 v99, 16, v3")
    a("s_lshl_b32 s20, s2, 4")
    for i in range(8):
        a(f"s_add_u32 s21, s20, {i*8192}")
        a(f"buffer_load_dwordx4 v[{100+4*i}:{103+4*i}], v99, s[28:31], s21 offen nt")
    a("v_lshlrev_b32 v98, 4, v3")
    a("buffer_load_dwordx4 v[92:95], v98, s[32:35], 0 offen")
    a("buffer_load_dwordx4 v[132:135], v98, s[32:35], 0 offen offset:1024")
    poll(0, 128, f"{name}_polla")
    a("v_lshlrev_b32 v98, 5, v3")
    for b in range(2):
        a(f"s_mov_b32 s20, {WS_MOD + b*12288}")
        a(f"buffer_load_dwordx4 v[{176+b*8}:{179+b*8}], v98, s[12:15], s20 offen")
        a(f"buffer_load_dwordx4 v[{180+b*8}:{183+b*8}], v98, s[12:15], s20 offen offset:16")
        a(f"buffer_load_dwordx4 v[{192+b*8}:{195+b*8}], v98, s[12:15], s20 offen offset:2048")
        a(f"buffer_load_dwordx4 v[{196+b*8}:{199+b*8}], v98, s[12:15], s20 offen offset:2064")
    for b, src in ((0, 92), (1, 132)):
        for q in range(4):
            a(f"v_lshlrev_b32 v{140+b*8+2*q}, 16, v{src+q}")
            a(f"v_and_b32 v{140+b*8+2*q+1}, 0xffff0000, v{src+q}")
    for b in range(2):
        x0 = 140 + b * 8
        a(f"v_add_f32 v96, v{x0}, v{x0+1}")
        for i in range(2, 8):
            a(f"v_add_f32 v96, v96, v{x0+i}")
        wave_sum_to_sgpr(96, 40)
        a(f"v_mov_b32 v97, {f32hex(1.0/512)}")
        a("s_nop 1")
        a("v_mul_f32 v97, s40, v97")
        for i in range(8):
            a(f"v_sub_f32 v95, v{x0+i}, v97")
            if i == 0:
                a("v_mul_f32 v96, v95, v95")
            else:
                a("v_fmac_f32 v96, v95, v95")
        wave_sum_to_sgpr(96, 41)
        a(f"v_mov_b32 v96, {f32hex(1.0/512)}")
        a("s_nop 1")
        a("v_mul_f32 v96, s41, v96")
        rne(96)
        rne(97)
        a(f"v_add_f32 v96, {f32hex(1e-5)}, v96")
        rne(96)
        a("v_sqrt_f32 v96, v96")
        a("s_nop 0")
        rne(96)
        a("v_rcp_f32 v96, v96")
        a("s_waitcnt vmcnt(0)")
        for i in range(8):
            a(f"v_sub_f32 v{x0+i}, v{x0+i}, v97")
            rne(x0 + i)
            a(f"v_mul_f32 v{x0+i}, v{x0+i}, v96")
            rne(x0 + i)
            a(f"v_add_f32 v{192+b*8+i}, 1.0, v{192+b*8+i}")
            rne(192 + b * 8 + i)
            a(f"v_mul_f32 v{x0+i}, v{x0+i}, v{192+b*8+i}")
            rne(x0 + i)
            a(f"v_add_f32 v{x0+i}, v{x0+i}, v{176+b*8+i}")
            rne(x0 + i)
    gemv8(100, 140, 160)
    for b in range(2):
        for q in range(4):
            a(f"v_cvt_pk_bf16_f32 v{176+b*4+q}, v{160+b*8+2*q}, v{160+b*8+2*q+1}")
    a("s_lshl_b32 s20, s2, 4")
    a(f"s_add_u32 s21, s20, {WS_Q + 8192}")
    a(f"s_add_u32 s20, s20, {WS_Q}")
    a("v_mov_b32 v76, 0")
    a("s_mov_b64 s[24:25], exec")
    a("s_mov_b32 exec_lo, 0")
    a("s_mov_b32 exec_hi, 0x80000000")
    a("buffer_store_dwordx4 v[176:179], v76, s[12:15], s20 offen sc1")
    a("buffer_store_dwordx4 v[180:183], v76, s[12:15], s21 offen sc1")
    a("s_mov_b64 exec, s[24:25]")
    publish(4, f"{name}_pb")


D = ENV("K2_D", 4)
K2_FLAGS = ENV("K2_FLAGS", "nt")
K2_NOCOMP = ENV("K2_NOCOMP", 0)
WF = ENV("W_FLAGS", "")
NT = 16
VQ = 4
VO = 20
VS = 52
VP = 56
VM, VL, VT, VA = 60, 61, 62, 63
VF = 64
VMC = 72
VK = 80
VV = VK + 16 * D


def attn_kernel(name):
    kernel_begin(name)
    a("s_cmp_ge_u32 s2, 512")
    a(f"s_cbranch_scc1 {name}_end")
    load_ptr(4, KA_K)
    load_ptr(8, KA_V)
    load_ptr(12, KA_WS)
    load_ptr(36, KA_DBG)
    a("v_lshrrev_b32 v3, 6, v0")
    a("s_nop 0")
    a("v_readfirstlane_b32 s16, v3")
    a("s_waitcnt lgkmcnt(0)")
    fin_srd(4, 134217728)
    fin_srd(8, 134217728)
    fin_srd(12, WS_BYTES)
    fin_srd(36, 256)
    a("s_cmp_eq_u32 s16, 0")
    a(f"s_cbranch_scc0 {name}_not1")
    s1_worker(name)
    a(f"s_branch {name}_roles")
    a.label(f"{name}_not1")
    a("s_cmp_eq_u32 s16, 1")
    a(f"s_cbranch_scc0 {name}_not0")
    a("s_cmp_ge_u32 s2, 384")
    a(f"s_cbranch_scc1 {name}_roles")
    s0_worker(name)
    a(f"s_branch {name}_roles")
    a.label(f"{name}_not0")
    a("s_cmp_eq_u32 s16, 3")
    a(f"s_cbranch_scc0 {name}_roles")
    a(f"s_cmp_ge_u32 s2, {(WS_ACC_END - WS_ACC) // 256}")
    a(f"s_cbranch_scc1 {name}_roles")
    a("s_lshl_b32 s20, s2, 8")
    a(f"s_add_u32 s20, s20, {WS_ACC}")
    a("v_and_b32 v3, 63, v0")
    a("v_lshlrev_b32 v3, 2, v3")
    a("v_mov_b32 v4, 0")
    a("buffer_store_dword v4, v3, s[12:15], s20 offen")
    a.label(f"{name}_roles")
    a("s_lshl_b32 s17, s2, 18")
    a("s_lshl_b32 s18, s16, 16")
    a("s_add_u32 s17, s17, s18")
    a("v_and_b32 v3, 63, v0")
    a("v_and_b32 v1, 15, v3")
    a("v_lshlrev_b32 v1, 8, v1")
    a("v_lshrrev_b32 v2, 4, v3")
    a("v_lshl_add_u32 v1, v2, 4, v1")
    a("v_lshlrev_b32 v2, 10, v2")
    a("v_and_b32 v73, 15, v3")
    a("v_lshl_add_u32 v2, v73, 4, v2")
    def issue_k(t):
        buf = VK + 16 * (t % D)
        a(f"s_add_u32 s18, s17, {t*4096}")
        for j in range(4):
            a(f"buffer_load_dwordx4 v[{buf+4*j}:{buf+4*j+3}], v1, s[4:7], s18 offen offset:{64*j} {K2_FLAGS}")

    def issue_v(t):
        buf = VV + 16 * (t % D)
        a(f"s_add_u32 s19, s17, {t*4096}")
        for j in range(4):
            a(f"buffer_load_dwordx4 v[{buf+4*j}:{buf+4*j+3}], v2, s[8:11], s19 offen offset:{256*j} {K2_FLAGS}")

    for t in range(D):
        issue_k(t)
        issue_v(t)
    poll(4, 512, f"{name}_pollb")
    a("s_lshr_b32 s20, s2, 5")
    a("s_lshl_b32 s20, s20, 10")
    a(f"s_add_u32 s20, s20, {WS_Q}")
    a("v_and_b32 v73, 15, v3")
    a("v_lshlrev_b32 v74, 8, v73")
    a("v_lshrrev_b32 v75, 4, v3")
    a("v_lshl_add_u32 v74, v75, 4, v74")
    a("v_mov_b32 v75, 0x40000000")
    a("v_cmp_gt_u32 vcc, 4, v73")
    a("s_nop 1")
    a("v_cndmask_b32 v74, v75, v74, vcc")
    for j in range(4):
        a(f"buffer_load_dwordx4 v[{VQ+4*j}:{VQ+4*j+3}], v74, s[12:15], s20 offen offset:{64*j}")
    a("s_waitcnt vmcnt(0)")
    for i in range(32):
        a(f"v_mov_b32 v{VO+i}, 0")
    a(f"v_mov_b32 v{VM}, 0xff800000")
    a(f"v_mov_b32 v{VL}, 0")
    a(f"s_mov_b32 s21, {f32hex(SCALE_C)}")
    for t in range(NT):
        kb = VK + 16 * (t % D)
        vb = VV + 16 * (t % D)
        after_k = 4 + 8 * (min(NT, t + D) - t - 1)
        a(f"s_waitcnt vmcnt({after_k})")
        a(f"v_mfma_f32_16x16x32_bf16 v[{VS}:{VS+3}], v[{kb}:{kb+3}], v[{VQ}:{VQ+3}], 0")
        for j in range(1, 4):
            a(f"v_mfma_f32_16x16x32_bf16 v[{VS}:{VS+3}], v[{kb+4*j}:{kb+4*j+3}], v[{VQ+4*j}:{VQ+4*j+3}], v[{VS}:{VS+3}]")
        if t + D < NT:
            issue_k(t + D)
            a("s_nop 3")
        else:
            a("s_nop 7")
        a("s_nop 1")
        a(f"v_max3_f32 v{VT}, v{VS}, v{VS+1}, v{VS+2}")
        a(f"v_max3_f32 v{VT}, v{VT}, v{VS+3}, v{VM}")
        a(f"v_cmp_gt_f32 vcc, v{VT}, v{VM}")
        a("s_nop 1")
        a(f"s_cbranch_vccz {name}_nr{t}")
        a(f"v_sub_f32 v{VA}, v{VM}, v{VT}")
        a(f"v_mul_f32 v{VA}, s21, v{VA}")
        a(f"v_exp_f32 v{VA}, v{VA}")
        a(f"v_mov_b32 v{VM}, v{VT}")
        a(f"v_mul_f32 v{VL}, v{VL}, v{VA}")
        a("s_nop 0")
        for h in range(4):
            for e in range(8):
                a(f"v_mul_f32_dpp v{VO+h*8+e}, v{VA}, v{VO+h*8+e} row_newbcast:{h} row_mask:0xf bank_mask:0xf")
        a.label(f"{name}_nr{t}")
        a(f"v_mul_f32 v{VMC}, s21, v{VM}")
        for i in range(4):
            a(f"v_fma_f32 v{VP+i}, v{VS+i}, s21, -v{VMC}")
        for i in range(4):
            a(f"v_exp_f32 v{VP+i}, v{VP+i}")
        after_v = 8 * (min(NT, t + D) - t - 1) + (4 if t + D < NT else 0)
        a(f"s_waitcnt vmcnt({after_v})")
        a(f"v_add_f32 v{VT}, v{VP}, v{VP+1}")
        a(f"v_add_f32 v{VA}, v{VP+2}, v{VP+3}")
        a(f"v_add_f32 v{VL}, v{VL}, v{VT}")
        a(f"v_add_f32 v{VL}, v{VL}, v{VA}")
        for j in range(4):
            for q in range(4):
                a(f"v_lshlrev_b32 v{VF+2*q}, 16, v{vb+4*j+q}")
                a(f"v_and_b32 v{VF+2*q+1}, 0xffff0000, v{vb+4*j+q}")
            for h in range(4):
                for e in range(8):
                    a(f"v_fmac_f32_dpp v{VO+h*8+e}, v{VP+j}, v{VF+e} row_newbcast:{h} row_mask:0xf bank_mask:0xf")
        if t + D < NT:
            issue_v(t + D)
    a("v_lshrrev_b32 v1, 4, v0")
    a("v_lshlrev_b32 v2, 11, v1")
    a("v_and_b32 v3, 15, v0")
    a("v_lshl_add_u32 v2, v3, 5, v2")
    for h in range(4):
        a(f"ds_write_b128 v2, v[{VO+h*8}:{VO+h*8+3}] offset:{h*512}")
        a(f"ds_write_b128 v2, v[{VO+h*8+4}:{VO+h*8+7}] offset:{h*512+16}")
    a("v_lshlrev_b32 v2, 5, v1")
    a("v_lshl_add_u32 v2, v3, 3, v2")
    a("v_cmp_gt_u32 vcc, 4, v3")
    a("s_and_saveexec_b64 s[24:25], vcc")
    a(f"ds_write_b64 v2, v[{VM}:{VL}] offset:32768")
    a("s_mov_b64 exec, s[24:25]")
    a("s_waitcnt lgkmcnt(0)")
    a("s_barrier")
    a("v_lshrrev_b32 v1, 6, v0")
    a("v_lshlrev_b32 v2, 3, v1")
    for s in range(16):
        a(f"ds_read_b64 v[{80+2*s}:{81+2*s}], v2 offset:{32768+s*32}")
    a("v_and_b32 v3, 63, v0")
    a("v_lshlrev_b32 v3, 3, v3")
    a("v_lshl_add_u32 v3, v1, 9, v3")
    for s in range(16):
        a(f"ds_read_b64 v[{120+2*s}:{121+2*s}], v3 offset:{s*2048}")
    a("s_waitcnt lgkmcnt(0)")
    a("v_max_f32 v4, v80, v82")
    for s in range(2, 16):
        a(f"v_max_f32 v4, v4, v{80+2*s}")
    a("v_mov_b32 v5, 0")
    a("v_mov_b32 v6, 0")
    a("v_mov_b32 v7, 0")
    for s in range(16):
        a(f"v_sub_f32 v8, v{80+2*s}, v4")
        a("v_mul_f32 v8, s21, v8")
        a("v_exp_f32 v8, v8")
        a("s_nop 0")
        a(f"v_fmac_f32 v5, v8, v{81+2*s}")
        a(f"v_fmac_f32 v6, v8, v{120+2*s}")
        a(f"v_fmac_f32 v7, v8, v{121+2*s}")
    a("s_lshl_b32 s20, s2, 11")
    a(f"s_add_u32 s20, s20, {WS_PO}")
    a("buffer_store_dwordx2 v[6:7], v3, s[12:15], s20 offen")
    a("v_and_b32 v9, 63, v0")
    a("v_cmp_eq_u32 vcc, 0, v9")
    a("s_and_saveexec_b64 s[24:25], vcc")
    a("s_lshr_b32 s20, s2, 5")
    a("s_lshl_b32 s20, s20, 9")
    a("s_and_b32 s22, s2, 31")
    a("s_lshl_b32 s22, s22, 2")
    a("s_add_u32 s20, s20, s22")
    a(f"s_add_u32 s22, s20, {WS_PL}")
    a(f"s_add_u32 s20, s20, {WS_PM}")
    a("v_lshlrev_b32 v1, 7, v1")
    a("buffer_store_dword v4, v1, s[12:15], s20 offen")
    a("buffer_store_dword v5, v1, s[12:15], s22 offen")
    a.label(f"{name}_end")
    a("s_endpgm")
    kernel_end(name, VV + 16 * D)


def wo_kernel(name):
    kernel_begin(name)
    a("s_cmp_ge_u32 s2, 64")
    a(f"s_cbranch_scc1 {name}_end")
    load_ptr(8, KA_WO)
    load_ptr(12, KA_WS)
    a("s_waitcnt lgkmcnt(0)")
    fin_srd(8, 4194304)
    fin_srd(12, WS_BYTES)
    a("v_lshrrev_b32 v1, 6, v0")
    a("v_lshlrev_b32 v1, 13, v1")
    a("v_and_b32 v2, 63, v0")
    a("v_lshl_add_u32 v1, v2, 4, v1")
    a("s_lshl_b32 s20, s2, 16")
    a("s_add_u32 s21, s20, 4096")
    for it in range(8):
        a(f"buffer_load_dwordx4 v[{32+4*it}:{35+4*it}], v1, s[8:11], s{20 if it < 4 else 21} offen offset:{(it%4)*1024} {WF}")
    a("s_lshr_b32 s22, s2, 1")
    a("s_lshr_b32 s23, s22, 2")
    a("s_and_b32 s24, s22, 3")
    a("s_lshl_b32 s25, s23, 9")
    a("s_lshl_b32 s26, s24, 7")
    a("s_add_u32 s25, s25, s26")
    a("v_lshrrev_b32 v3, 8, v0")
    a("v_lshlrev_b32 v4, 12, v3")
    a(f"s_add_u32 s26, s25, {WS_PM}")
    a(f"s_add_u32 s27, s25, {WS_PL}")
    for i in range(8):
        a(f"buffer_load_dwordx4 v[{64+4*i}:{67+4*i}], v4, s[12:15], s26 offen offset:{16*i}")
    for i in range(8):
        a(f"buffer_load_dwordx4 v[{96+4*i}:{99+4*i}], v4, s[12:15], s27 offen offset:{16*i}")
    a("s_lshl_b32 s25, s23, 16")
    a("s_lshl_b32 s26, s24, 9")
    a("s_add_u32 s25, s25, s26")
    a("s_and_b32 s26, s2, 1")
    a("s_lshl_b32 s26, s26, 8")
    a("s_add_u32 s25, s25, s26")
    a(f"s_add_u32 s25, s25, {WS_PO}")
    a("v_lshlrev_b32 v5, 19, v3")
    a("v_bfe_u32 v6, v0, 6, 2")
    a("v_lshl_add_u32 v5, v6, 14, v5")
    a("v_lshl_add_u32 v5, v2, 2, v5")
    for i in range(8):
        a(f"s_add_u32 s26, s25, {i*2048}")
        a(f"buffer_load_dword v{128+i}, v5, s[12:15], s26 offen")
    a(f"s_mov_b32 s28, {f32hex(SCALE_C)}")
    a("s_waitcnt vmcnt(8)")
    a("v_max_f32 v7, v64, v65")
    for s in range(2, 32):
        a(f"v_max_f32 v7, v7, v{64+s}")
    a("v_mov_b32 v8, 0")
    for s in range(32):
        a(f"v_sub_f32 v{64+s}, v{64+s}, v7")
        a(f"v_mul_f32 v{64+s}, s28, v{64+s}")
        a(f"v_exp_f32 v{64+s}, v{64+s}")
        a("s_nop 0")
        a(f"v_fmac_f32 v8, v{64+s}, v{96+s}")
    for i in range(8):
        a(f"v_mov_b32 v{136+i}, v{64+i}")
    for sq in range(1, 4):
        a(f"v_cmp_eq_u32 vcc, {sq}, v6")
        a("s_nop 1")
        for i in range(8):
            a(f"v_cndmask_b32 v{136+i}, v{136+i}, v{64+sq*8+i}, vcc")
    a("s_waitcnt vmcnt(0)")
    a("v_mul_f32 v9, v136, v128")
    for i in range(1, 8):
        a(f"v_fmac_f32 v9, v{136+i}, v{128+i}")
    a("v_lshlrev_b32 v10, 2, v0")
    a("ds_write_b32 v10, v9")
    a("s_waitcnt lgkmcnt(0)")
    a("s_barrier")
    a("v_lshlrev_b32 v10, 10, v3")
    a("v_lshl_add_u32 v10, v2, 2, v10")
    a("ds_read_b32 v11, v10 offset:0")
    a("ds_read_b32 v12, v10 offset:256")
    a("ds_read_b32 v13, v10 offset:512")
    a("ds_read_b32 v14, v10 offset:768")
    a("v_rcp_f32 v8, v8")
    a("s_waitcnt lgkmcnt(0)")
    a("v_add_f32 v11, v11, v12")
    a("v_add_f32 v13, v13, v14")
    a("v_add_f32 v11, v11, v13")
    a("v_mul_f32 v11, v11, v8")
    rne(11)
    a("v_lshlrev_b32 v10, 8, v3")
    a("v_lshl_add_u32 v10, v2, 2, v10")
    a("ds_write_b32 v10, v11 offset:2048")
    a("s_waitcnt lgkmcnt(0)")
    a("s_barrier")
    a("v_lshrrev_b32 v10, 6, v0")
    a("v_lshlrev_b32 v10, 5, v10")
    for b in range(2):
        for it in range(8):
            a(f"ds_read_b32 v{144+b*8+it}, v10 offset:{2048+b*256+it*4}")
    for i in range(16):
        a(f"v_mov_b32 v{160+i}, 0")
    a("s_waitcnt lgkmcnt(0)")
    for it in range(8):
        for q in range(4):
            src = 32 + 4 * it + q
            a(f"v_lshlrev_b32 v12, 16, v{src}")
            a(f"v_and_b32 v13, 0xffff0000, v{src}")
            for b in range(2):
                a(f"v_fmac_f32 v{160+b*8+2*q}, v12, v{144+b*8+it}")
                a(f"v_fmac_f32 v{160+b*8+2*q+1}, v13, v{144+b*8+it}")
    a("v_lshrrev_b32 v10, 6, v0")
    a("v_lshlrev_b32 v10, 12, v10")
    a("v_lshl_add_u32 v10, v2, 5, v10")
    for b in range(2):
        a(f"ds_write_b128 v10, v[{160+b*8}:{163+b*8}] offset:{4096+b*2048}")
        a(f"ds_write_b128 v10, v[{164+b*8}:{167+b*8}] offset:{4096+b*2048+16}")
    a("s_waitcnt lgkmcnt(0)")
    a("s_barrier")
    a("v_lshlrev_b32 v10, 2, v0")
    for b in range(2):
        for w in range(8):
            a(f"ds_read_b32 v{32+b*8+w}, v10 offset:{4096+w*4096+b*2048}")
    a("s_waitcnt lgkmcnt(0)")
    for b in range(2):
        for w in range(1, 8):
            a(f"v_add_f32 v{32+b*8}, v{32+b*8}, v{32+b*8+w}")
    a(f"s_mov_b32 s20, {WS_ACC_WO}")
    a(f"s_mov_b32 s21, {WS_ACC_WO+2048}")
    a("buffer_atomic_add_f32 v32, v10, s[12:15], s20 offen")
    a("buffer_atomic_add_f32 v40, v10, s[12:15], s21 offen")
    a.label(f"{name}_end")
    a("s_endpgm")
    kernel_end(name, 176)


def gu_kernel(name):
    kernel_begin(name)
    a("s_cmp_ge_u32 s2, 112")
    a(f"s_cbranch_scc1 {name}_end")
    load_ptr(4, KA_X)
    load_ptr(8, KA_WG)
    load_ptr(16, KA_WU)
    load_ptr(12, KA_WS)
    a("s_waitcnt lgkmcnt(0)")
    fin_srd(4, 2048)
    fin_srd(8, 512 * 3584)
    fin_srd(16, 512 * 3584)
    fin_srd(12, WS_BYTES)
    a("s_mul_i32 s20, s2, 9363")
    a("s_lshr_b32 s20, s20, 16")
    a("s_mul_i32 s21, s20, 7")
    a("s_sub_u32 s21, s2, s21")
    a("s_lshl_b32 s22, s20, 5")
    a("v_lshrrev_b32 v1, 5, v0")
    a("v_add_u32 v1, s22, v1")
    a("s_movk_i32 s23, 3584")
    a("v_mul_lo_u32 v1, v1, s23")
    a("v_and_b32 v2, 31, v0")
    a("v_lshl_add_u32 v1, v2, 4, v1")
    a("s_lshl_b32 s23, s21, 9")
    a("v_add_u32 v1, s23, v1")
    for it in range(4):
        a(f"s_mov_b32 s24, {it*8*3584}")
        a(f"buffer_load_dwordx4 v[{32+4*it}:{35+4*it}], v1, s[8:11], s24 offen {WF}")
        a(f"buffer_load_dwordx4 v[{48+4*it}:{51+4*it}], v1, s[16:19], s24 offen {WF}")
    a("v_lshlrev_b32 v2, 3, v0")
    a("buffer_load_dwordx2 v[4:5], v2, s[4:7], 0 offen")
    a("v_lshlrev_b32 v2, 4, v0")
    a(f"s_mov_b32 s24, {WS_ACC_WO}")
    a("buffer_load_dwordx4 v[24:27], v2, s[12:15], s24 offen")
    a("v_lshrrev_b32 v3, 7, v0")
    a("v_mul_u32_u24 v3, 12288, v3")
    a("v_and_b32 v6, 127, v0")
    a("v_lshl_add_u32 v3, v6, 4, v3")
    a(f"s_mov_b32 s25, {WS_MOD + 2*2048}")
    a(f"buffer_load_dwordx4 v[28:31], v3, s[12:15], s25 offen")
    a("s_waitcnt vmcnt(0)")
    unpack_x4(4, 8)
    for i in range(4):
        rne(24 + i)
        a(f"v_mul_f32 v{24+i}, v{24+i}, v{28+i}")
        rne(24 + i)
        a(f"v_add_f32 v{8+i}, v{8+i}, v{24+i}")
        rne(8 + i)
    a("s_cmp_lg_u32 s2, 0")
    a(f"s_cbranch_scc1 {name}_nox1")
    a(f"s_mov_b32 s24, {WS_X1}")
    a("buffer_store_dwordx4 v[8:11], v2, s[12:15], s24 offen")
    a.label(f"{name}_nox1")
    ln_prologue(8, 12, 3, 4, 40960, 12)
    a("v_lshlrev_b32 v2, 4, v0")
    a("ds_write_b128 v2, v[8:11]")
    a("s_waitcnt lgkmcnt(0)")
    a("s_barrier")
    a("v_lshrrev_b32 v2, 5, v0")
    a("v_add_lshl_u32 v2, s22, v2, 2")
    for b in range(2):
        for it in range(4):
            a(f"ds_read_b32 v{80+b*4+it}, v2 offset:{(b*512+8*it)*4}")
    for i in range(32):
        a(f"v_mov_b32 v{96+i}, 0")
    a("s_waitcnt lgkmcnt(0)")
    for m in range(2):
        for it in range(4):
            for q in range(4):
                src = 32 + 16 * m + 4 * it + q
                a(f"v_lshlrev_b32 v12, 16, v{src}")
                a(f"v_and_b32 v13, 0xffff0000, v{src}")
                for b in range(2):
                    a(f"v_fmac_f32 v{96+m*16+b*8+2*q}, v12, v{80+b*4+it}")
                    a(f"v_fmac_f32 v{96+m*16+b*8+2*q+1}, v13, v{80+b*4+it}")
    a("v_lshrrev_b32 v2, 5, v0")
    a("v_lshlrev_b32 v2, 12, v2")
    a("v_and_b32 v3, 31, v0")
    a("v_lshl_add_u32 v2, v3, 5, v2")
    for mb in range(4):
        a(f"ds_write_b128 v2, v[{96+mb*8}:{99+mb*8}] offset:{4096+mb*1024}")
        a(f"ds_write_b128 v2, v[{100+mb*8}:{103+mb*8}] offset:{4096+mb*1024+16}")
    a("s_waitcnt lgkmcnt(0)")
    a("s_barrier")
    a("v_lshlrev_b32 v2, 2, v0")
    for mb in range(4):
        for r in range(8):
            a(f"ds_read_b32 v{32+mb*8+r}, v2 offset:{4096+r*4096+mb*1024}")
    a("s_waitcnt lgkmcnt(0)")
    for mb in range(4):
        for r in range(1, 8):
            a(f"v_add_f32 v{32+mb*8}, v{32+mb*8}, v{32+mb*8+r}")
    a("s_lshl_b32 s23, s21, 10")
    for mb in range(4):
        a(f"s_add_u32 s24, s23, {WS_ACC_GU + mb*1792*4}")
        a(f"buffer_atomic_add_f32 v{32+mb*8}, v2, s[12:15], s24 offen")
    a.label(f"{name}_end")
    a("s_endpgm")
    kernel_end(name, 128)


def dn_kernel(name):
    kernel_begin(name)
    a("s_cmp_ge_u32 s2, 56")
    a(f"s_cbranch_scc1 {name}_end")
    load_ptr(8, KA_WD)
    load_ptr(12, KA_WS)
    load_ptr(16, KA_OUT)
    load_ptr(4, KA_DBG)
    a("s_waitcnt lgkmcnt(0)")
    fin_srd(8, 1792 * 1024)
    fin_srd(12, WS_BYTES)
    fin_srd(16, 2048)
    fin_srd(4, 256)
    a("v_lshrrev_b32 v1, 6, v0")
    a("v_lshlrev_b32 v1, 13, v1")
    a("v_and_b32 v2, 63, v0")
    a("v_lshl_add_u32 v1, v2, 4, v1")
    a("s_lshl_b32 s20, s2, 15")
    a("s_add_u32 s21, s20, 4096")
    for it in range(8):
        a(f"buffer_load_dwordx4 v[{32+4*it}:{35+4*it}], v1, s[8:11], s{20 if it < 4 else 21} offen offset:{(it%4)*1024} {WF}")
    a("v_lshrrev_b32 v3, 5, v0")
    a("v_mul_u32_u24 v3, 7168, v3")
    a("v_and_b32 v4, 31, v0")
    a("v_lshl_add_u32 v3, v4, 2, v3")
    a("s_lshl_b32 s22, s2, 7")
    a(f"s_add_u32 s23, s22, {WS_ACC_GU + 2*1792*4}")
    a(f"s_add_u32 s22, s22, {WS_ACC_GU}")
    a("v_cmp_gt_u32 vcc, 64, v0")
    a("s_and_saveexec_b64 s[24:25], vcc")
    a("buffer_load_dword v5, v3, s[12:15], s22 offen")
    a("buffer_load_dword v6, v3, s[12:15], s23 offen")
    a("s_waitcnt vmcnt(0)")
    rne(5)
    rne(6)
    a("v_mul_f32 v5, v5, v6")
    rne(5)
    a("v_lshlrev_b32 v4, 2, v0")
    a("ds_write_b32 v4, v5")
    a("s_mov_b64 exec, s[24:25]")
    a("s_waitcnt lgkmcnt(0)")
    a("s_barrier")
    a("v_lshrrev_b32 v10, 6, v0")
    a("v_lshlrev_b32 v10, 5, v10")
    for b in range(2):
        for it in range(8):
            a(f"ds_read_b32 v{80+b*8+it}, v10 offset:{b*128+it*4}")
    for i in range(16):
        a(f"v_mov_b32 v{96+i}, 0")
    a("s_waitcnt vmcnt(0) lgkmcnt(0)")
    for it in range(8):
        for q in range(4):
            src = 32 + 4 * it + q
            a(f"v_lshlrev_b32 v12, 16, v{src}")
            a(f"v_and_b32 v13, 0xffff0000, v{src}")
            for b in range(2):
                a(f"v_fmac_f32 v{96+b*8+2*q}, v12, v{80+b*8+it}")
                a(f"v_fmac_f32 v{96+b*8+2*q+1}, v13, v{80+b*8+it}")
    a("v_lshrrev_b32 v10, 6, v0")
    a("v_lshlrev_b32 v10, 12, v10")
    a("v_lshl_add_u32 v10, v2, 5, v10")
    for b in range(2):
        a(f"ds_write_b128 v10, v[{96+b*8}:{99+b*8}] offset:{4096+b*2048}")
        a(f"ds_write_b128 v10, v[{100+b*8}:{103+b*8}] offset:{4096+b*2048+16}")
    a("s_waitcnt lgkmcnt(0)")
    a("s_barrier")
    a("v_lshlrev_b32 v10, 2, v0")
    for k in range(4):
        for w in range(4):
            a(f"ds_read_b32 v{32+k*4+w}, v10 offset:{4096+w*4096+k*1024}")
    a("s_waitcnt lgkmcnt(0)")
    for k in range(4):
        for w in range(1, 4):
            a(f"v_add_f32 v{32+k*4}, v{32+k*4}, v{32+k*4+w}")
    for k in range(4):
        a(f"s_mov_b32 s20, {WS_ACC_DN + k*1024}")
        a(f"buffer_atomic_add_f32 v{32+k*4}, v10, s[12:15], s20 offen")
    a("s_waitcnt vmcnt(0)")
    a("s_barrier")
    a("v_mov_b32 v11, 1")
    a("v_mov_b32 v12, 0")
    a("v_cmp_eq_u32 vcc, 0, v0")
    a("s_and_saveexec_b64 s[24:25], vcc")
    a("buffer_atomic_add v11, v12, s[4:7], 0 offen sc0")
    a("s_waitcnt vmcnt(0)")
    a("v_lshlrev_b32 v13, 0, v11")
    a("ds_write_b32 v12, v13")
    a("s_mov_b64 exec, s[24:25]")
    a("s_waitcnt lgkmcnt(0)")
    a("s_barrier")
    a("ds_read_b32 v13, v12")
    a("s_waitcnt lgkmcnt(0)")
    a("s_nop 0")
    a("v_readfirstlane_b32 s26, v13")
    a("s_cmp_lg_u32 s26, 55")
    a(f"s_cbranch_scc1 {name}_end")
    a("v_lshlrev_b32 v2, 4, v0")
    a(f"s_mov_b32 s20, {WS_ACC_DN}")
    a("buffer_load_dwordx4 v[24:27], v2, s[12:15], s20 offen sc1")
    a(f"s_mov_b32 s20, {WS_X1}")
    a("buffer_load_dwordx4 v[8:11], v2, s[12:15], s20 offen")
    a("v_lshrrev_b32 v3, 7, v0")
    a("v_mul_u32_u24 v3, 12288, v3")
    a("v_and_b32 v6, 127, v0")
    a("v_lshl_add_u32 v3, v6, 4, v3")
    a(f"s_mov_b32 s21, {WS_MOD + 5*2048}")
    a(f"buffer_load_dwordx4 v[28:31], v3, s[12:15], s21 offen")
    a("s_waitcnt vmcnt(0)")
    for i in range(4):
        rne(24 + i)
        a(f"v_mul_f32 v{24+i}, v{24+i}, v{28+i}")
        rne(24 + i)
        a(f"v_add_f32 v{8+i}, v{8+i}, v{24+i}")
    a("v_cvt_pk_bf16_f32 v8, v8, v9")
    a("v_cvt_pk_bf16_f32 v9, v10, v11")
    a("v_lshlrev_b32 v2, 3, v0")
    a("buffer_store_dwordx2 v[8:9], v2, s[16:19], 0 offen")
    a.label(f"{name}_end")
    a("s_endpgm")
    kernel_end(name, 112)


def main():
    hdr = []
    for line in open(REF):
        if line.startswith("; @launch"):
            break
        if line.startswith("; Override") or line.startswith("; grid="):
            continue
        hdr.append(line.rstrip("\n"))
    launches = [
        ("k2_attn_kernel", 512, 256, 33280),
        ("k3_wo_kernel", 64, 512, 36864),
        ("k4_gu_kernel", 112, 256, 41024),
        ("k5_dn_kernel", 56, 256, 20480),
    ]
    for n, g, b, l in launches:
        hdr.append(f"; @launch kernel={n} grid=({g},1,1) block=({b},1,1) lds={l}")
    hdr.append('.amdgcn_target "amdgcn-amd-amdhsa--gfx950"')
    hdr.append(".text")
    attn_kernel("k2_attn_kernel")
    wo_kernel("k3_wo_kernel")
    gu_kernel("k4_gu_kernel")
    dn_kernel("k5_dn_kernel")
    tail = ['.section .rodata,"a"']
    for n, v, s in KERNELS:
        nv = (v + 7) // 8 * 8
        tail += [".p2align 6", f".amdhsa_kernel {n}",
                 f"  .amdhsa_next_free_vgpr {nv}",
                 f"  .amdhsa_next_free_sgpr {s}",
                 f"  .amdhsa_accum_offset {nv}",
                 "  .amdhsa_group_segment_fixed_size 0",
                 "  .amdhsa_kernarg_size 112",
                 "  .amdhsa_user_sgpr_count 2",
                 "  .amdhsa_user_sgpr_kernarg_segment_ptr 1",
                 "  .amdhsa_system_sgpr_workgroup_id_x 1",
                 ".end_amdhsa_kernel"]
    open(OUT, "w").write("\n".join(hdr + a.lines + tail) + "\n")


main()
```

```python
import sys

import os
REF = "adaLN_cond__gqa_block_cached__glu_gated_bilinear__decode.s.ref"
OUT = os.environ.get("GEN_OUT", REF[:-4])
ENV = lambda k, d: type(d)(os.environ.get(k, d))

KA_X, KA_K, KA_V, KA_WQ, KA_WO, KA_BX, KA_WG, KA_WU, KA_WD, KA_C, KA_WMOD, KA_OUT, KA_DBG, KA_WS = [8 * i for i in range(14)]

WS_MOD = 0
WS_Q = 32768
WS_X1 = 49152
WS_ACC = 65536
WS_ACC_WO = 65536
WS_ACC_DN = 69632
WS_ACC_GU = 73728
WS_ACC_END = 102400
WS_PM = 131072
WS_PL = 139264
WS_PO = 262144
WS_BYTES = 0x20000000

SCALE_C = 1.4426950408889634 / (128 ** 0.5)

import struct


def f32hex(x):
    return "0x%08x" % struct.unpack("<I", struct.pack("<f", x))[0]


class Asm:
    def __init__(self):
        self.lines = []

    def __call__(self, s):
        self.lines.append("    " + s)

    def label(self, s):
        self.lines.append(s + ":")

    def raw(self, s):
        self.lines.append(s)


a = Asm()
KERNELS = []


def kernel_begin(name):
    a.raw(f".globl {name}")
    a.raw(".p2align 8")
    a.raw(f".type {name},@function")
    a.label(name)
    if name[:2] in os.environ.get("EMPTY", "").split(","):
        a("s_endpgm")


def kernel_end(name, vgprs, sgprs=96):
    KERNELS.append((name, vgprs, sgprs))


def load_ptr(dst, off):
    a(f"s_load_dwordx2 s[{dst}:{dst+1}], s[0:1], {off}")


def fin_srd(dst, nbytes):
    a(f"s_mov_b32 s{dst+2}, {nbytes}")
    a(f"s_mov_b32 s{dst+3}, 0x00020000")


def rne(v, tmp=None):
    t = v if tmp is None else tmp
    a(f"v_cvt_pk_bf16_f32 v{t}, v{v}, v{v}")
    a(f"v_lshlrev_b32 v{v}, 16, v{t}")


def wave_sum_to_sgpr(v, s, op="add"):
    opn = {"add": "v_add_f32", "max": "v_max_f32"}[op]
    for ctl in ["quad_perm:[1,0,3,2]", "quad_perm:[2,3,0,1]", "row_half_mirror", "row_mirror"]:
        a("s_nop 1")
        a(f"{opn}_dpp v{v}, v{v}, v{v} {ctl} row_mask:0xf bank_mask:0xf")
    a("s_nop 1")
    a(f"{opn}_dpp v{v}, v{v}, v{v} row_bcast:15 row_mask:0xa bank_mask:0xf")
    a("s_nop 1")
    a(f"{opn}_dpp v{v}, v{v}, v{v} row_bcast:31 row_mask:0xc bank_mask:0xf")
    a("s_nop 1")
    a(f"v_readlane_b32 s{s}, v{v}, 63")


def ln_prologue(xv, srd_ws, mod_shift, mod_scale, lds_red, vt):
    a(f"v_lshrrev_b32 v{vt}, 7, v0")
    a(f"v_mul_u32_u24 v{vt}, 12288, v{vt}")
    a(f"v_and_b32 v{vt+1}, 127, v0")
    a(f"v_lshl_add_u32 v{vt}, v{vt+1}, 4, v{vt}")
    a(f"s_mov_b32 s42, {WS_MOD + mod_shift*2048}")
    a(f"s_mov_b32 s43, {WS_MOD + mod_scale*2048}")
    a(f"buffer_load_dwordx4 v[{vt+4}:{vt+7}], v{vt}, s[{srd_ws}:{srd_ws+3}], s42 offen")
    a(f"buffer_load_dwordx4 v[{vt+8}:{vt+11}], v{vt}, s[{srd_ws}:{srd_ws+3}], s43 offen")
    a(f"v_add_f32 v{vt}, v{xv}, v{xv+1}")
    a(f"v_add_f32 v{vt+1}, v{xv+2}, v{xv+3}")
    a(f"v_add_f32 v{vt}, v{vt}, v{vt+1}")
    wave_sum_to_sgpr(vt, 40)
    a(f"v_lshrrev_b32 v{vt+1}, 6, v0")
    a(f"v_lshlrev_b32 v{vt+1}, 2, v{vt+1}")
    a(f"v_mov_b32 v{vt}, s40")
    a(f"ds_write_b32 v{vt+1}, v{vt} offset:{lds_red}")
    a("s_waitcnt lgkmcnt(0)")
    a("s_barrier")
    a(f"v_lshrrev_b32 v{vt+1}, 7, v0")
    a(f"v_lshlrev_b32 v{vt+1}, 3, v{vt+1}")
    a(f"ds_read_b64 v[{vt+2}:{vt+3}], v{vt+1} offset:{lds_red}")
    a("s_waitcnt lgkmcnt(0)")
    a(f"v_add_f32 v{vt+2}, v{vt+2}, v{vt+3}")
    a(f"v_mul_f32 v{vt+2}, {f32hex(1.0/512)}, v{vt+2}")
    for i in range(4):
        a(f"v_sub_f32 v{vt+3}, v{xv+i}, v{vt+2}")
        if i == 0:
            a(f"v_mul_f32 v{vt}, v{vt+3}, v{vt+3}")
        else:
            a(f"v_fmac_f32 v{vt}, v{vt+3}, v{vt+3}")
    wave_sum_to_sgpr(vt, 41)
    a(f"v_lshrrev_b32 v{vt+1}, 6, v0")
    a(f"v_lshlrev_b32 v{vt+1}, 2, v{vt+1}")
    a(f"v_mov_b32 v{vt}, s41")
    a(f"ds_write_b32 v{vt+1}, v{vt} offset:{lds_red+16}")
    a("s_waitcnt lgkmcnt(0)")
    a("s_barrier")
    a(f"v_lshrrev_b32 v{vt+1}, 7, v0")
    a(f"v_lshlrev_b32 v{vt+1}, 3, v{vt+1}")
    a(f"ds_read_b64 v[{vt}:{vt+1}], v{vt+1} offset:{lds_red+16}")
    a("s_waitcnt lgkmcnt(0)")
    a(f"v_add_f32 v{vt}, v{vt}, v{vt+1}")
    a(f"v_mul_f32 v{vt}, {f32hex(1.0/512)}, v{vt}")
    rne(vt)
    rne(vt + 2)
    a(f"v_add_f32 v{vt}, {f32hex(1e-5)}, v{vt}")
    rne(vt)
    a(f"v_sqrt_f32 v{vt}, v{vt}")
    a("s_nop 0")
    rne(vt)
    a(f"v_rcp_f32 v{vt}, v{vt}")
    a("s_waitcnt vmcnt(0)")
    for i in range(4):
        a(f"v_sub_f32 v{xv+i}, v{xv+i}, v{vt+2}")
        rne(xv + i)
        a(f"v_mul_f32 v{xv+i}, v{xv+i}, v{vt}")
        rne(xv + i)
        a(f"v_add_f32 v{vt+8+i}, 1.0, v{vt+8+i}")
        rne(vt + 8 + i)
        a(f"v_mul_f32 v{xv+i}, v{xv+i}, v{vt+8+i}")
        rne(xv + i)
        a(f"v_add_f32 v{xv+i}, v{xv+i}, v{vt+4+i}")
        rne(xv + i)


def unpack_x4(src_pair, dst):
    a(f"v_and_b32 v{dst+1}, 0xffff0000, v{src_pair}")
    a(f"v_lshlrev_b32 v{dst}, 16, v{src_pair}")
    a(f"v_and_b32 v{dst+3}, 0xffff0000, v{src_pair+1}")
    a(f"v_lshlrev_b32 v{dst+2}, 16, v{src_pair+1}")


def gemv_nsplit(name, which):
    nwg = 96 if which == "mod" else 128
    row_stride = 6144 if which == "mod" else 8192
    w_bytes = 512 * row_stride
    kernel_begin(name)
    a(f"s_cmp_ge_u32 s2, {nwg}")
    a(f"s_cbranch_scc1 {name}_end")
    load_ptr(8, KA_C if which == "mod" else KA_X)
    load_ptr(12, KA_WMOD if which == "mod" else KA_WQ)
    load_ptr(16, KA_WS)
    a("s_waitcnt lgkmcnt(0)")
    fin_srd(8, 2048)
    fin_srd(12, w_bytes)
    fin_srd(16, WS_BYTES)
    if which == "mod":
        nz = (WS_ACC_END - WS_ACC) // 1024
        a(f"s_cmp_ge_u32 s2, {nz}")
        a(f"s_cbranch_scc1 {name}_nozero")
        a("s_lshl_b32 s21, s2, 10")
        a("v_lshlrev_b32 v3, 2, v0")
        a("v_add_u32 v3, s21, v3")
        a("v_mov_b32 v6, 0")
        a(f"s_mov_b32 s22, {WS_ACC}")
        a("buffer_store_dword v6, v3, s[16:19], s22 offen")
        a.label(f"{name}_nozero")
    a("v_lshlrev_b32 v2, 3, v0")
    a("buffer_load_dwordx2 v[4:5], v2, s[8:11], 0 offen")
    a("v_lshrrev_b32 v1, 2, v0")
    a(f"s_mov_b32 s20, {row_stride}")
    a("v_mul_lo_u32 v1, v1, s20")
    a("v_and_b32 v2, 3, v0")
    a("v_lshl_add_u32 v1, v2, 4, v1")
    a("s_lshl_b32 s21, s2, 6")
    a("v_add_u32 v1, s21, v1")
    for it in range(8):
        a(f"s_mov_b32 s20, {it*64*row_stride}")
        a(f"buffer_load_dwordx4 v[{32+4*it}:{35+4*it}], v1, s[12:15], s20 offen {WF}")
    a("s_waitcnt vmcnt(8)")
    unpack_x4(4, 8)
    if which == "mod":
        for i in range(4):
            a(f"v_mul_f32 v12, {f32hex(-1.4426950408889634)}, v{8+i}")
            a("v_exp_f32 v12, v12")
            a("s_nop 0")
            a("v_add_f32 v12, 1.0, v12")
            a("v_rcp_f32 v12, v12")
            a("s_nop 0")
            a(f"v_mul_f32 v{8+i}, v{8+i}, v12")
            rne(8 + i)
    else:
        ln_prologue(8, 16, 0, 1, 20480, 12)
    a("v_lshlrev_b32 v2, 4, v0")
    a("ds_write_b128 v2, v[8:11]")
    a("s_waitcnt lgkmcnt(0)")
    a("s_barrier")
    a("v_lshrrev_b32 v2, 2, v0")
    a("v_lshlrev_b32 v2, 2, v2")
    for b in range(2):
        for it in range(8):
            a(f"ds_read_b32 v{80+b*8+it}, v2 offset:{(b*512+64*it)*4}")
    for i in range(16):
        a(f"v_mov_b32 v{64+i}, 0")
    a("s_waitcnt vmcnt(0) lgkmcnt(0)")
    for it in range(8):
        for q in range(4):
            src = 32 + 4 * it + q
            a(f"v_lshlrev_b32 v12, 16, v{src}")
            a(f"v_and_b32 v13, 0xffff0000, v{src}")
            for b in range(2):
                a(f"v_fmac_f32 v{64+b*8+2*q}, v12, v{80+b*8+it}")
                a(f"v_fmac_f32 v{64+b*8+2*q+1}, v13, v{80+b*8+it}")
    a("v_lshlrev_b32 v2, 6, v0")
    for i in range(4):
        a(f"ds_write_b128 v2, v[{64+4*i}:{67+4*i}] offset:{4096+16*i}")
    a("s_waitcnt lgkmcnt(0)")
    a("s_barrier")
    a("v_and_b32 v2, 63, v0")
    a("v_lshrrev_b32 v3, 5, v2")
    a("v_lshlrev_b32 v3, 5, v3")
    a("v_and_b32 v4, 7, v2")
    a("v_lshl_add_u32 v3, v4, 2, v3")
    a("v_bfe_u32 v4, v2, 3, 2")
    a("v_lshl_add_u32 v3, v4, 6, v3")
    a("v_lshrrev_b32 v4, 6, v0")
    a("v_lshl_add_u32 v3, v4, 12, v3")
    for r in range(16):
        a(f"ds_read_b32 v{32+r}, v3 offset:{4096+r*256}")
    a("s_waitcnt lgkmcnt(0)")
    for r in range(1, 16):
        a(f"v_add_f32 v32, v32, v{32+r}")
    a("v_lshlrev_b32 v3, 2, v0")
    a("ds_write_b32 v3, v32 offset:0")
    a("s_waitcnt lgkmcnt(0)")
    a("s_barrier")
    a("v_cmp_gt_u32 vcc, 64, v0")
    a("s_and_saveexec_b64 s[24:25], vcc")
    a(f"s_cbranch_execz {name}_end")
    for r in range(4):
        a(f"ds_read_b32 v{32+r}, v3 offset:{r*256}")
    a("s_waitcnt lgkmcnt(0)")
    a("v_add_f32 v32, v32, v33")
    a("v_add_f32 v34, v34, v35")
    a("v_add_f32 v32, v32, v34")
    a("v_lshrrev_b32 v4, 5, v0")
    a("v_and_b32 v5, 31, v0")
    a("s_lshl_b32 s21, s2, 5")
    a("v_add_u32 v5, s21, v5")
    if which == "mod":
        rne(32)
        a("v_mul_u32_u24 v4, 3072, v4")
        a("v_add_lshl_u32 v5, v4, v5, 2")
        a(f"buffer_store_dword v32, v5, s[16:19], 0 offen offset:{WS_MOD}")
    else:
        a("v_cvt_pk_bf16_f32 v32, v32, v32")
        a("v_lshlrev_b32 v4, 12, v4")
        a("v_add_lshl_u32 v5, v4, v5, 1")
        a(f"s_mov_b32 s22, {WS_Q}")
        a("buffer_store_short v32, v5, s[16:19], s22 offen")
    a.label(f"{name}_end")
    a("s_endpgm")
    kernel_end(name, 96)


SPIN_MAX = 200000


def wave_reduce16(acc):
    steps = [("quad_perm:[1,0,3,2]", "0xf"), ("quad_perm:[2,3,0,1]", "0xf"), ("row_half_mirror", "0xf"),
             ("row_mirror", "0xf"), ("row_bcast:15", "0xa"), ("row_bcast:31", "0xc")]
    a("s_nop 1")
    for ctl, rm in steps:
        for i in range(16):
            a(f"v_add_f32_dpp v{acc+i}, v{acc+i}, v{acc+i} {ctl} row_mask:{rm} bank_mask:0xf")
        a("s_nop 1")


def publish(cnt_off, lbl):
    a("s_waitcnt vmcnt(0)")
    a("v_mov_b32 v77, 1")
    a("v_mov_b32 v76, 0")
    a("s_mov_b64 s[24:25], exec")
    a("s_mov_b64 exec, 1")
    a(f"buffer_atomic_add v77, v76, s[36:39], 0 offen offset:{cnt_off}")
    a("s_mov_b64 exec, s[24:25]")


def poll(cnt_off, target, lbl):
    a("v_mov_b32 v76, 0")
    a("s_mov_b32 s26, 0")
    a.label(lbl)
    a(f"buffer_load_dword v77, v76, s[36:39], 0 offen offset:{cnt_off} sc1")
    a("s_waitcnt vmcnt(0)")
    a("v_readfirstlane_b32 s27, v77")
    a(f"s_cmp_ge_u32 s27, {target}")
    a(f"s_cbranch_scc1 {lbl}_ok")
    a("s_sleep 16")
    a("s_add_u32 s26, s26, 1")
    a(f"s_cmp_lt_u32 s26, {SPIN_MAX}")
    a(f"s_cbranch_scc1 {lbl}")
    a.label(f"{lbl}_ok")


def s0_worker(name):
    load_ptr(28, KA_WMOD)
    load_ptr(32, KA_C)
    a("s_waitcnt lgkmcnt(0)")
    fin_srd(28, 512 * 6144)
    fin_srd(32, 2048)
    a("v_and_b32 v3, 63, v0")
    a("v_mul_u32_u24 v99, 49152, v3")
    a("s_lshl_b32 s20, s2, 4")
    for i in range(8):
        a(f"s_add_u32 s21, s20, {i*6144}")
        a(f"buffer_load_dwordx4 v[{100+4*i}:{103+4*i}], v99, s[28:31], s21 offen nt")
    a("v_lshlrev_b32 v98, 4, v3")
    a("buffer_load_dwordx4 v[92:95], v98, s[32:35], 0 offen")
    a("buffer_load_dwordx4 v[132:135], v98, s[32:35], 0 offen offset:1024")
    a("s_waitcnt vmcnt(0)")
    for b, src in ((0, 92), (1, 132)):
        for q in range(4):
            a(f"v_lshlrev_b32 v{140+b*8+2*q}, 16, v{src+q}")
            a(f"v_and_b32 v{140+b*8+2*q+1}, 0xffff0000, v{src+q}")
    for i in range(16):
        a(f"v_mul_f32 v96, {f32hex(-1.4426950408889634)}, v{140+i}")
        a("v_exp_f32 v96, v96")
        a("s_nop 0")
        a("v_add_f32 v96, 1.0, v96")
        a("v_rcp_f32 v96, v96")
        a("s_nop 0")
        a(f"v_mul_f32 v{140+i}, v{140+i}, v96")
        rne(140 + i)
    gemv8(100, 140, 160)
    for i in range(16):
        rne(160 + i)
    a("s_lshl_b32 s20, s2, 5")
    a(f"s_add_u32 s21, s20, {WS_MOD + 12288}")
    a(f"s_add_u32 s20, s20, {WS_MOD}")
    a("v_mov_b32 v76, 0")
    a("s_mov_b64 s[24:25], exec")
    a("s_mov_b32 exec_lo, 0")
    a("s_mov_b32 exec_hi, 0x80000000")
    a("buffer_store_dwordx4 v[160:163], v76, s[12:15], s20 offen sc1")
    a("buffer_store_dwordx4 v[164:167], v76, s[12:15], s20 offen offset:16 sc1")
    a("buffer_store_dwordx4 v[168:171], v76, s[12:15], s21 offen sc1")
    a("buffer_store_dwordx4 v[172:175], v76, s[12:15], s21 offen offset:16 sc1")
    a("s_mov_b64 exec, s[24:25]")
    a("s_cmp_ge_u32 s2, 128")
    a(f"s_cbranch_scc1 {name}_s0done")
    publish(0, f"{name}_pa")
    a.label(f"{name}_s0done")


def gemv8(wreg, hreg, acc):
    for i in range(16):
        a(f"v_mov_b32 v{acc+i}, 0")
    for i in range(8):
        for q in range(4):
            src = wreg + 4 * i + q
            a(f"v_lshlrev_b32 v96, 16, v{src}")
            a(f"v_and_b32 v97, 0xffff0000, v{src}")
            for b in range(2):
                a(f"v_fmac_f32 v{acc+b*8+2*q}, v96, v{hreg+b*8+i}")
                a(f"v_fmac_f32 v{acc+b*8+2*q+1}, v97, v{hreg+b*8+i}")
    wave_reduce16(acc)


def s1_worker(name):
    load_ptr(28, KA_WQ)
    load_ptr(32, KA_X)
    a("s_waitcnt lgkmcnt(0)")
    fin_srd(28, 512 * 8192)
    fin_srd(32, 2048)
    a("v_and_b32 v3, 63, v0")
    a("v_lshlrev_b32 v99, 16, v3")
    a("s_lshl_b32 s20, s2, 4")
    for i in range(8):
        a(f"s_add_u32 s21, s20, {i*8192}")
        a(f"buffer_load_dwordx4 v[{100+4*i}:{103+4*i}], v99, s[28:31], s21 offen nt")
    a("v_lshlrev_b32 v98, 4, v3")
    a("buffer_load_dwordx4 v[92:95], v98, s[32:35], 0 offen")
    a("buffer_load_dwordx4 v[132:135], v98, s[32:35], 0 offen offset:1024")
    poll(0, 128, f"{name}_polla")
    a("v_lshlrev_b32 v98, 5, v3")
    for b in range(2):
        a(f"s_mov_b32 s20, {WS_MOD + b*12288}")
        a(f"buffer_load_dwordx4 v[{176+b*8}:{179+b*8}], v98, s[12:15], s20 offen sc1")
        a(f"buffer_load_dwordx4 v[{180+b*8}:{183+b*8}], v98, s[12:15], s20 offen offset:16 sc1")
        a(f"buffer_load_dwordx4 v[{192+b*8}:{195+b*8}], v98, s[12:15], s20 offen offset:2048 sc1")
        a(f"buffer_load_dwordx4 v[{196+b*8}:{199+b*8}], v98, s[12:15], s20 offen offset:2064 sc1")
    for b, src in ((0, 92), (1, 132)):
        for q in range(4):
            a(f"v_lshlrev_b32 v{140+b*8+2*q}, 16, v{src+q}")
            a(f"v_and_b32 v{140+b*8+2*q+1}, 0xffff0000, v{src+q}")
    for b in range(2):
        x0 = 140 + b * 8
        a(f"v_add_f32 v96, v{x0}, v{x0+1}")
        for i in range(2, 8):
            a(f"v_add_f32 v96, v96, v{x0+i}")
        wave_sum_to_sgpr(96, 40)
        a(f"v_mov_b32 v97, {f32hex(1.0/512)}")
        a("s_nop 1")
        a("v_mul_f32 v97, s40, v97")
        for i in range(8):
            a(f"v_sub_f32 v95, v{x0+i}, v97")
            if i == 0:
                a("v_mul_f32 v96, v95, v95")
            else:
                a("v_fmac_f32 v96, v95, v95")
        wave_sum_to_sgpr(96, 41)
        a(f"v_mov_b32 v96, {f32hex(1.0/512)}")
        a("s_nop 1")
        a("v_mul_f32 v96, s41, v96")
        rne(96)
        rne(97)
        a(f"v_add_f32 v96, {f32hex(1e-5)}, v96")
        rne(96)
        a("v_sqrt_f32 v96, v96")
        a("s_nop 0")
        rne(96)
        a("v_rcp_f32 v96, v96")
        a("s_waitcnt vmcnt(0)")
        for i in range(8):
            a(f"v_sub_f32 v{x0+i}, v{x0+i}, v97")
            rne(x0 + i)
            a(f"v_mul_f32 v{x0+i}, v{x0+i}, v96")
            rne(x0 + i)
            a(f"v_add_f32 v{192+b*8+i}, 1.0, v{192+b*8+i}")
            rne(192 + b * 8 + i)
            a(f"v_mul_f32 v{x0+i}, v{x0+i}, v{192+b*8+i}")
            rne(x0 + i)
            a(f"v_add_f32 v{x0+i}, v{x0+i}, v{176+b*8+i}")
            rne(x0 + i)
    gemv8(100, 140, 160)
    for b in range(2):
        for q in range(4):
            a(f"v_cvt_pk_bf16_f32 v{176+b*4+q}, v{160+b*8+2*q}, v{160+b*8+2*q+1}")
    a("s_lshl_b32 s20, s2, 4")
    a(f"s_add_u32 s21, s20, {WS_Q + 8192}")
    a(f"s_add_u32 s20, s20, {WS_Q}")
    a("v_mov_b32 v76, 0")
    a("s_mov_b64 s[24:25], exec")
    a("s_mov_b32 exec_lo, 0")
    a("s_mov_b32 exec_hi, 0x80000000")
    a("buffer_store_dwordx4 v[176:179], v76, s[12:15], s20 offen sc1")
    a("buffer_store_dwordx4 v[180:183], v76, s[12:15], s21 offen sc1")
    a("s_mov_b64 exec, s[24:25]")
    publish(4, f"{name}_pb")


D = ENV("K2_D", 4)
K2_FLAGS = ENV("K2_FLAGS", "nt")
K2_NOCOMP = ENV("K2_NOCOMP", 0)
WF = ENV("W_FLAGS", "")
NT = 16
VQ = 4
VO = 20
VS = 52
VP = 56
VM, VL, VT, VA = 60, 61, 62, 63
VF = 64
VMC = 72
VK = 80
VV = VK + 16 * D


def attn_kernel(name):
    kernel_begin(name)
    a("s_cmp_ge_u32 s2, 512")
    a(f"s_cbranch_scc1 {name}_end")
    load_ptr(4, KA_K)
    load_ptr(8, KA_V)
    load_ptr(12, KA_WS)
    load_ptr(36, KA_DBG)
    a("v_lshrrev_b32 v3, 6, v0")
    a("s_nop 0")
    a("v_readfirstlane_b32 s16, v3")
    a("s_waitcnt lgkmcnt(0)")
    fin_srd(4, 134217728)
    fin_srd(8, 134217728)
    fin_srd(12, WS_BYTES)
    fin_srd(36, 256)
    a("s_cmp_eq_u32 s16, 0")
    a(f"s_cbranch_scc0 {name}_not1")
    s1_worker(name)
    a(f"s_branch {name}_roles")
    a.label(f"{name}_not1")
    a("s_cmp_eq_u32 s16, 1")
    a(f"s_cbranch_scc0 {name}_not0")
    a("s_cmp_ge_u32 s2, 384")
    a(f"s_cbranch_scc1 {name}_roles")
    s0_worker(name)
    a(f"s_branch {name}_roles")
    a.label(f"{name}_not0")
    a("s_cmp_eq_u32 s16, 3")
    a(f"s_cbranch_scc0 {name}_roles")
    a(f"s_cmp_ge_u32 s2, {(WS_ACC_END - WS_ACC) // 256}")
    a(f"s_cbranch_scc1 {name}_roles")
    a("s_lshl_b32 s20, s2, 8")
    a(f"s_add_u32 s20, s20, {WS_ACC}")
    a("v_and_b32 v3, 63, v0")
    a("v_lshlrev_b32 v3, 2, v3")
    a("v_mov_b32 v4, 0")
    a("buffer_store_dword v4, v3, s[12:15], s20 offen")
    a.label(f"{name}_roles")
    a("s_lshl_b32 s17, s2, 18")
    a("s_lshl_b32 s18, s16, 16")
    a("s_add_u32 s17, s17, s18")
    a("v_and_b32 v3, 63, v0")
    a("v_and_b32 v1, 15, v3")
    a("v_lshlrev_b32 v1, 8, v1")
    a("v_lshrrev_b32 v2, 4, v3")
    a("v_lshl_add_u32 v1, v2, 4, v1")
    a("v_lshlrev_b32 v2, 10, v2")
    a("v_and_b32 v73, 15, v3")
    a("v_lshl_add_u32 v2, v73, 4, v2")
    def issue_k(t):
        buf = VK + 16 * (t % D)
        a(f"s_add_u32 s18, s17, {t*4096}")
        for j in range(4):
            a(f"buffer_load_dwordx4 v[{buf+4*j}:{buf+4*j+3}], v1, s[4:7], s18 offen offset:{64*j} {K2_FLAGS}")

    def issue_v(t):
        buf = VV + 16 * (t % D)
        a(f"s_add_u32 s19, s17, {t*4096}")
        for j in range(4):
            a(f"buffer_load_dwordx4 v[{buf+4*j}:{buf+4*j+3}], v2, s[8:11], s19 offen offset:{256*j} {K2_FLAGS}")

    for t in range(D):
        issue_k(t)
        issue_v(t)
    poll(4, 512, f"{name}_pollb")
    a("s_lshr_b32 s20, s2, 5")
    a("s_lshl_b32 s20, s20, 10")
    a(f"s_add_u32 s20, s20, {WS_Q}")
    a("v_and_b32 v73, 15, v3")
    a("v_lshlrev_b32 v74, 8, v73")
    a("v_lshrrev_b32 v75, 4, v3")
    a("v_lshl_add_u32 v74, v75, 4, v74")
    a("v_mov_b32 v75, 0x40000000")
    a("v_cmp_gt_u32 vcc, 4, v73")
    a("s_nop 1")
    a("v_cndmask_b32 v74, v75, v74, vcc")
    for j in range(4):
        a(f"buffer_load_dwordx4 v[{VQ+4*j}:{VQ+4*j+3}], v74, s[12:15], s20 offen offset:{64*j} sc1")
    a("s_waitcnt vmcnt(0)")
    for i in range(32):
        a(f"v_mov_b32 v{VO+i}, 0")
    a(f"v_mov_b32 v{VM}, 0xff800000")
    a(f"v_mov_b32 v{VL}, 0")
    a(f"s_mov_b32 s21, {f32hex(SCALE_C)}")
    for t in range(NT):
        kb = VK + 16 * (t % D)
        vb = VV + 16 * (t % D)
        after_k = 4 + 8 * (min(NT, t + D) - t - 1)
        a(f"s_waitcnt vmcnt({after_k})")
        a(f"v_mfma_f32_16x16x32_bf16 v[{VS}:{VS+3}], v[{kb}:{kb+3}], v[{VQ}:{VQ+3}], 0")
        for j in range(1, 4):
            a(f"v_mfma_f32_16x16x32_bf16 v[{VS}:{VS+3}], v[{kb+4*j}:{kb+4*j+3}], v[{VQ+4*j}:{VQ+4*j+3}], v[{VS}:{VS+3}]")
        if t + D < NT:
            issue_k(t + D)
            a("s_nop 3")
        else:
            a("s_nop 7")
        a("s_nop 1")
        a(f"v_max3_f32 v{VT}, v{VS}, v{VS+1}, v{VS+2}")
        a(f"v_max3_f32 v{VT}, v{VT}, v{VS+3}, v{VM}")
        a(f"v_cmp_gt_f32 vcc, v{VT}, v{VM}")
        a("s_nop 1")
        a(f"s_cbranch_vccz {name}_nr{t}")
        a(f"v_sub_f32 v{VA}, v{VM}, v{VT}")
        a(f"v_mul_f32 v{VA}, s21, v{VA}")
        a(f"v_exp_f32 v{VA}, v{VA}")
        a(f"v_mov_b32 v{VM}, v{VT}")
        a(f"v_mul_f32 v{VL}, v{VL}, v{VA}")
        a("s_nop 0")
        for h in range(4):
            for e in range(8):
                a(f"v_mul_f32_dpp v{VO+h*8+e}, v{VA}, v{VO+h*8+e} row_newbcast:{h} row_mask:0xf bank_mask:0xf")
        a.label(f"{name}_nr{t}")
        a(f"v_mul_f32 v{VMC}, s21, v{VM}")
        for i in range(4):
            a(f"v_fma_f32 v{VP+i}, v{VS+i}, s21, -v{VMC}")
        for i in range(4):
            a(f"v_exp_f32 v{VP+i}, v{VP+i}")
        after_v = 8 * (min(NT, t + D) - t - 1) + (4 if t + D < NT else 0)
        a(f"s_waitcnt vmcnt({after_v})")
        a(f"v_add_f32 v{VT}, v{VP}, v{VP+1}")
        a(f"v_add_f32 v{VA}, v{VP+2}, v{VP+3}")
        a(f"v_add_f32 v{VL}, v{VL}, v{VT}")
        a(f"v_add_f32 v{VL}, v{VL}, v{VA}")
        for j in range(4):
            for q in range(4):
                a(f"v_lshlrev_b32 v{VF+2*q}, 16, v{vb+4*j+q}")
                a(f"v_and_b32 v{VF+2*q+1}, 0xffff0000, v{vb+4*j+q}")
            for h in range(4):
                for e in range(8):
                    a(f"v_fmac_f32_dpp v{VO+h*8+e}, v{VP+j}, v{VF+e} row_newbcast:{h} row_mask:0xf bank_mask:0xf")
        if t + D < NT:
            issue_v(t + D)
    a("v_lshrrev_b32 v1, 4, v0")
    a("v_lshlrev_b32 v2, 11, v1")
    a("v_and_b32 v3, 15, v0")
    a("v_lshl_add_u32 v2, v3, 5, v2")
    for h in range(4):
        a(f"ds_write_b128 v2, v[{VO+h*8}:{VO+h*8+3}] offset:{h*512}")
        a(f"ds_write_b128 v2, v[{VO+h*8+4}:{VO+h*8+7}] offset:{h*512+16}")
    a("v_lshlrev_b32 v2, 5, v1")
    a("v_lshl_add_u32 v2, v3, 3, v2")
    a("v_cmp_gt_u32 vcc, 4, v3")
    a("s_and_saveexec_b64 s[24:25], vcc")
    a(f"ds_write_b64 v2, v[{VM}:{VL}] offset:32768")
    a("s_mov_b64 exec, s[24:25]")
    a("s_waitcnt lgkmcnt(0)")
    a("s_barrier")
    a("v_lshrrev_b32 v1, 6, v0")
    a("v_lshlrev_b32 v2, 3, v1")
    for s in range(16):
        a(f"ds_read_b64 v[{80+2*s}:{81+2*s}], v2 offset:{32768+s*32}")
    a("v_and_b32 v3, 63, v0")
    a("v_lshlrev_b32 v3, 3, v3")
    a("v_lshl_add_u32 v3, v1, 9, v3")
    for s in range(16):
        a(f"ds_read_b64 v[{120+2*s}:{121+2*s}], v3 offset:{s*2048}")
    a("s_waitcnt lgkmcnt(0)")
    a("v_max_f32 v4, v80, v82")
    for s in range(2, 16):
        a(f"v_max_f32 v4, v4, v{80+2*s}")
    a("v_mov_b32 v5, 0")
    a("v_mov_b32 v6, 0")
    a("v_mov_b32 v7, 0")
    for s in range(16):
        a(f"v_sub_f32 v8, v{80+2*s}, v4")
        a("v_mul_f32 v8, s21, v8")
        a("v_exp_f32 v8, v8")
        a("s_nop 0")
        a(f"v_fmac_f32 v5, v8, v{81+2*s}")
        a(f"v_fmac_f32 v6, v8, v{120+2*s}")
        a(f"v_fmac_f32 v7, v8, v{121+2*s}")
    a("s_lshl_b32 s20, s2, 11")
    a(f"s_add_u32 s20, s20, {WS_PO}")
    a("buffer_store_dwordx2 v[6:7], v3, s[12:15], s20 offen")
    a("v_and_b32 v9, 63, v0")
    a("v_cmp_eq_u32 vcc, 0, v9")
    a("s_and_saveexec_b64 s[24:25], vcc")
    a("s_lshr_b32 s20, s2, 5")
    a("s_lshl_b32 s20, s20, 9")
    a("s_and_b32 s22, s2, 31")
    a("s_lshl_b32 s22, s22, 2")
    a("s_add_u32 s20, s20, s22")
    a(f"s_add_u32 s22, s20, {WS_PL}")
    a(f"s_add_u32 s20, s20, {WS_PM}")
    a("v_lshlrev_b32 v1, 7, v1")
    a("buffer_store_dword v4, v1, s[12:15], s20 offen")
    a("buffer_store_dword v5, v1, s[12:15], s22 offen")
    a.label(f"{name}_end")
    a("s_endpgm")
    kernel_end(name, VV + 16 * D)


def wo_kernel(name):
    kernel_begin(name)
    a("s_cmp_ge_u32 s2, 64")
    a(f"s_cbranch_scc1 {name}_end")
    load_ptr(8, KA_WO)
    load_ptr(12, KA_WS)
    a("s_waitcnt lgkmcnt(0)")
    fin_srd(8, 4194304)
    fin_srd(12, WS_BYTES)
    a("v_lshrrev_b32 v1, 6, v0")
    a("v_lshlrev_b32 v1, 13, v1")
    a("v_and_b32 v2, 63, v0")
    a("v_lshl_add_u32 v1, v2, 4, v1")
    a("s_lshl_b32 s20, s2, 16")
    a("s_add_u32 s21, s20, 4096")
    for it in range(8):
        a(f"buffer_load_dwordx4 v[{32+4*it}:{35+4*it}], v1, s[8:11], s{20 if it < 4 else 21} offen offset:{(it%4)*1024} {WF}")
    a("s_lshr_b32 s22, s2, 1")
    a("s_lshr_b32 s23, s22, 2")
    a("s_and_b32 s24, s22, 3")
    a("s_lshl_b32 s25, s23, 9")
    a("s_lshl_b32 s26, s24, 7")
    a("s_add_u32 s25, s25, s26")
    a("v_lshrrev_b32 v3, 8, v0")
    a("v_lshlrev_b32 v4, 12, v3")
    a(f"s_add_u32 s26, s25, {WS_PM}")
    a(f"s_add_u32 s27, s25, {WS_PL}")
    for i in range(8):
        a(f"buffer_load_dwordx4 v[{64+4*i}:{67+4*i}], v4, s[12:15], s26 offen offset:{16*i}")
    for i in range(8):
        a(f"buffer_load_dwordx4 v[{96+4*i}:{99+4*i}], v4, s[12:15], s27 offen offset:{16*i}")
    a("s_lshl_b32 s25, s23, 16")
    a("s_lshl_b32 s26, s24, 9")
    a("s_add_u32 s25, s25, s26")
    a("s_and_b32 s26, s2, 1")
    a("s_lshl_b32 s26, s26, 8")
    a("s_add_u32 s25, s25, s26")
    a(f"s_add_u32 s25, s25, {WS_PO}")
    a("v_lshlrev_b32 v5, 19, v3")
    a("v_bfe_u32 v6, v0, 6, 2")
    a("v_lshl_add_u32 v5, v6, 14, v5")
    a("v_lshl_add_u32 v5, v2, 2, v5")
    for i in range(8):
        a(f"s_add_u32 s26, s25, {i*2048}")
        a(f"buffer_load_dword v{128+i}, v5, s[12:15], s26 offen")
    a(f"s_mov_b32 s28, {f32hex(SCALE_C)}")
    a("s_waitcnt vmcnt(8)")
    a("v_max_f32 v7, v64, v65")
    for s in range(2, 32):
        a(f"v_max_f32 v7, v7, v{64+s}")
    a("v_mov_b32 v8, 0")
    for s in range(32):
        a(f"v_sub_f32 v{64+s}, v{64+s}, v7")
        a(f"v_mul_f32 v{64+s}, s28, v{64+s}")
        a(f"v_exp_f32 v{64+s}, v{64+s}")
        a("s_nop 0")
        a(f"v_fmac_f32 v8, v{64+s}, v{96+s}")
    for i in range(8):
        a(f"v_mov_b32 v{136+i}, v{64+i}")
    for sq in range(1, 4):
        a(f"v_cmp_eq_u32 vcc, {sq}, v6")
        a("s_nop 1")
        for i in range(8):
            a(f"v_cndmask_b32 v{136+i}, v{136+i}, v{64+sq*8+i}, vcc")
    a("s_waitcnt vmcnt(0)")
    a("v_mul_f32 v9, v136, v128")
    for i in range(1, 8):
        a(f"v_fmac_f32 v9, v{136+i}, v{128+i}")
    a("v_lshlrev_b32 v10, 2, v0")
    a("ds_write_b32 v10, v9")
    a("s_waitcnt lgkmcnt(0)")
    a("s_barrier")
    a("v_lshlrev_b32 v10, 10, v3")
    a("v_lshl_add_u32 v10, v2, 2, v10")
    a("ds_read_b32 v11, v10 offset:0")
    a("ds_read_b32 v12, v10 offset:256")
    a("ds_read_b32 v13, v10 offset:512")
    a("ds_read_b32 v14, v10 offset:768")
    a("v_rcp_f32 v8, v8")
    a("s_waitcnt lgkmcnt(0)")
    a("v_add_f32 v11, v11, v12")
    a("v_add_f32 v13, v13, v14")
    a("v_add_f32 v11, v11, v13")
    a("v_mul_f32 v11, v11, v8")
    rne(11)
    a("v_lshlrev_b32 v10, 8, v3")
    a("v_lshl_add_u32 v10, v2, 2, v10")
    a("ds_write_b32 v10, v11 offset:2048")
    a("s_waitcnt lgkmcnt(0)")
    a("s_barrier")
    a("v_lshrrev_b32 v10, 6, v0")
    a("v_lshlrev_b32 v10, 5, v10")
    for b in range(2):
        for it in range(8):
            a(f"ds_read_b32 v{144+b*8+it}, v10 offset:{2048+b*256+it*4}")
    for i in range(16):
        a(f"v_mov_b32 v{160+i}, 0")
    a("s_waitcnt lgkmcnt(0)")
    for it in range(8):
        for q in range(4):
            src = 32 + 4 * it + q
            a(f"v_lshlrev_b32 v12, 16, v{src}")
            a(f"v_and_b32 v13, 0xffff0000, v{src}")
            for b in range(2):
                a(f"v_fmac_f32 v{160+b*8+2*q}, v12, v{144+b*8+it}")
                a(f"v_fmac_f32 v{160+b*8+2*q+1}, v13, v{144+b*8+it}")
    a("v_lshrrev_b32 v10, 6, v0")
    a("v_lshlrev_b32 v10, 12, v10")
    a("v_lshl_add_u32 v10, v2, 5, v10")
    for b in range(2):
        a(f"ds_write_b128 v10, v[{160+b*8}:{163+b*8}] offset:{4096+b*2048}")
        a(f"ds_write_b128 v10, v[{164+b*8}:{167+b*8}] offset:{4096+b*2048+16}")
    a("s_waitcnt lgkmcnt(0)")
    a("s_barrier")
    a("v_lshlrev_b32 v10, 2, v0")
    for b in range(2):
        for w in range(8):
            a(f"ds_read_b32 v{32+b*8+w}, v10 offset:{4096+w*4096+b*2048}")
    a("s_waitcnt lgkmcnt(0)")
    for b in range(2):
        for w in range(1, 8):
            a(f"v_add_f32 v{32+b*8}, v{32+b*8}, v{32+b*8+w}")
    a(f"s_mov_b32 s20, {WS_ACC_WO}")
    a(f"s_mov_b32 s21, {WS_ACC_WO+2048}")
    a("buffer_atomic_add_f32 v32, v10, s[12:15], s20 offen")
    a("buffer_atomic_add_f32 v40, v10, s[12:15], s21 offen")
    a.label(f"{name}_end")
    a("s_endpgm")
    kernel_end(name, 176)


def gu_kernel(name):
    kernel_begin(name)
    a("s_cmp_ge_u32 s2, 112")
    a(f"s_cbranch_scc1 {name}_end")
    load_ptr(4, KA_X)
    load_ptr(8, KA_WG)
    load_ptr(16, KA_WU)
    load_ptr(12, KA_WS)
    a("s_waitcnt lgkmcnt(0)")
    fin_srd(4, 2048)
    fin_srd(8, 512 * 3584)
    fin_srd(16, 512 * 3584)
    fin_srd(12, WS_BYTES)
    a("s_mul_i32 s20, s2, 9363")
    a("s_lshr_b32 s20, s20, 16")
    a("s_mul_i32 s21, s20, 7")
    a("s_sub_u32 s21, s2, s21")
    a("s_lshl_b32 s22, s20, 5")
    a("v_lshrrev_b32 v1, 5, v0")
    a("v_add_u32 v1, s22, v1")
    a("s_movk_i32 s23, 3584")
    a("v_mul_lo_u32 v1, v1, s23")
    a("v_and_b32 v2, 31, v0")
    a("v_lshl_add_u32 v1, v2, 4, v1")
    a("s_lshl_b32 s23, s21, 9")
    a("v_add_u32 v1, s23, v1")
    for it in range(4):
        a(f"s_mov_b32 s24, {it*8*3584}")
        a(f"buffer_load_dwordx4 v[{32+4*it}:{35+4*it}], v1, s[8:11], s24 offen {WF}")
        a(f"buffer_load_dwordx4 v[{48+4*it}:{51+4*it}], v1, s[16:19], s24 offen {WF}")
    a("v_lshlrev_b32 v2, 3, v0")
    a("buffer_load_dwordx2 v[4:5], v2, s[4:7], 0 offen")
    a("v_lshlrev_b32 v2, 4, v0")
    a(f"s_mov_b32 s24, {WS_ACC_WO}")
    a("buffer_load_dwordx4 v[24:27], v2, s[12:15], s24 offen")
    a("v_lshrrev_b32 v3, 7, v0")
    a("v_mul_u32_u24 v3, 12288, v3")
    a("v_and_b32 v6, 127, v0")
    a("v_lshl_add_u32 v3, v6, 4, v3")
    a(f"s_mov_b32 s25, {WS_MOD + 2*2048}")
    a(f"buffer_load_dwordx4 v[28:31], v3, s[12:15], s25 offen")
    a("s_waitcnt vmcnt(0)")
    unpack_x4(4, 8)
    for i in range(4):
        rne(24 + i)
        a(f"v_mul_f32 v{24+i}, v{24+i}, v{28+i}")
        rne(24 + i)
        a(f"v_add_f32 v{8+i}, v{8+i}, v{24+i}")
        rne(8 + i)
    a("s_cmp_lg_u32 s2, 0")
    a(f"s_cbranch_scc1 {name}_nox1")
    a(f"s_mov_b32 s24, {WS_X1}")
    a("buffer_store_dwordx4 v[8:11], v2, s[12:15], s24 offen")
    a.label(f"{name}_nox1")
    ln_prologue(8, 12, 3, 4, 40960, 12)
    a("v_lshlrev_b32 v2, 4, v0")
    a("ds_write_b128 v2, v[8:11]")
    a("s_waitcnt lgkmcnt(0)")
    a("s_barrier")
    a("v_lshrrev_b32 v2, 5, v0")
    a("v_add_lshl_u32 v2, s22, v2, 2")
    for b in range(2):
        for it in range(4):
            a(f"ds_read_b32 v{80+b*4+it}, v2 offset:{(b*512+8*it)*4}")
    for i in range(32):
        a(f"v_mov_b32 v{96+i}, 0")
    a("s_waitcnt lgkmcnt(0)")
    for m in range(2):
        for it in range(4):
            for q in range(4):
                src = 32 + 16 * m + 4 * it + q
                a(f"v_lshlrev_b32 v12, 16, v{src}")
                a(f"v_and_b32 v13, 0xffff0000, v{src}")
                for b in range(2):
                    a(f"v_fmac_f32 v{96+m*16+b*8+2*q}, v12, v{80+b*4+it}")
                    a(f"v_fmac_f32 v{96+m*16+b*8+2*q+1}, v13, v{80+b*4+it}")
    a("v_lshrrev_b32 v2, 5, v0")
    a("v_lshlrev_b32 v2, 12, v2")
    a("v_and_b32 v3, 31, v0")
    a("v_lshl_add_u32 v2, v3, 5, v2")
    for mb in range(4):
        a(f"ds_write_b128 v2, v[{96+mb*8}:{99+mb*8}] offset:{4096+mb*1024}")
        a(f"ds_write_b128 v2, v[{100+mb*8}:{103+mb*8}] offset:{4096+mb*1024+16}")
    a("s_waitcnt lgkmcnt(0)")
    a("s_barrier")
    a("v_lshlrev_b32 v2, 2, v0")
    for mb in range(4):
        for r in range(8):
            a(f"ds_read_b32 v{32+mb*8+r}, v2 offset:{4096+r*4096+mb*1024}")
    a("s_waitcnt lgkmcnt(0)")
    for mb in range(4):
        for r in range(1, 8):
            a(f"v_add_f32 v{32+mb*8}, v{32+mb*8}, v{32+mb*8+r}")
    a("s_lshl_b32 s23, s21, 10")
    for mb in range(4):
        a(f"s_add_u32 s24, s23, {WS_ACC_GU + mb*1792*4}")
        a(f"buffer_atomic_add_f32 v{32+mb*8}, v2, s[12:15], s24 offen")
    a.label(f"{name}_end")
    a("s_endpgm")
    kernel_end(name, 128)


def dn_kernel(name):
    kernel_begin(name)
    a("s_cmp_ge_u32 s2, 56")
    a(f"s_cbranch_scc1 {name}_end")
    load_ptr(8, KA_WD)
    load_ptr(12, KA_WS)
    load_ptr(16, KA_OUT)
    load_ptr(4, KA_DBG)
    a("s_waitcnt lgkmcnt(0)")
    fin_srd(8, 1792 * 1024)
    fin_srd(12, WS_BYTES)
    fin_srd(16, 2048)
    fin_srd(4, 256)
    a("v_lshrrev_b32 v1, 6, v0")
    a("v_lshlrev_b32 v1, 13, v1")
    a("v_and_b32 v2, 63, v0")
    a("v_lshl_add_u32 v1, v2, 4, v1")
    a("s_lshl_b32 s20, s2, 15")
    a("s_add_u32 s21, s20, 4096")
    for it in range(8):
        a(f"buffer_load_dwordx4 v[{32+4*it}:{35+4*it}], v1, s[8:11], s{20 if it < 4 else 21} offen offset:{(it%4)*1024} {WF}")
    a("v_lshrrev_b32 v3, 5, v0")
    a("v_mul_u32_u24 v3, 7168, v3")
    a("v_and_b32 v4, 31, v0")
    a("v_lshl_add_u32 v3, v4, 2, v3")
    a("s_lshl_b32 s22, s2, 7")
    a(f"s_add_u32 s23, s22, {WS_ACC_GU + 2*1792*4}")
    a(f"s_add_u32 s22, s22, {WS_ACC_GU}")
    a("v_cmp_gt_u32 vcc, 64, v0")
    a("s_and_saveexec_b64 s[24:25], vcc")
    a("buffer_load_dword v5, v3, s[12:15], s22 offen")
    a("buffer_load_dword v6, v3, s[12:15], s23 offen")
    a("s_waitcnt vmcnt(0)")
    rne(5)
    rne(6)
    a("v_mul_f32 v5, v5, v6")
    rne(5)
    a("v_lshlrev_b32 v4, 2, v0")
    a("ds_write_b32 v4, v5")
    a("s_mov_b64 exec, s[24:25]")
    a("s_waitcnt lgkmcnt(0)")
    a("s_barrier")
    a("v_lshrrev_b32 v10, 6, v0")
    a("v_lshlrev_b32 v10, 5, v10")
    for b in range(2):
        for it in range(8):
            a(f"ds_read_b32 v{80+b*8+it}, v10 offset:{b*128+it*4}")
    for i in range(16):
        a(f"v_mov_b32 v{96+i}, 0")
    a("s_waitcnt vmcnt(0) lgkmcnt(0)")
    for it in range(8):
        for q in range(4):
            src = 32 + 4 * it + q
            a(f"v_lshlrev_b32 v12, 16, v{src}")
            a(f"v_and_b32 v13, 0xffff0000, v{src}")
            for b in range(2):
                a(f"v_fmac_f32 v{96+b*8+2*q}, v12, v{80+b*8+it}")
                a(f"v_fmac_f32 v{96+b*8+2*q+1}, v13, v{80+b*8+it}")
    a("v_lshrrev_b32 v10, 6, v0")
    a("v_lshlrev_b32 v10, 12, v10")
    a("v_lshl_add_u32 v10, v2, 5, v10")
    for b in range(2):
        a(f"ds_write_b128 v10, v[{96+b*8}:{99+b*8}] offset:{4096+b*2048}")
        a(f"ds_write_b128 v10, v[{100+b*8}:{103+b*8}] offset:{4096+b*2048+16}")
    a("s_waitcnt lgkmcnt(0)")
    a("s_barrier")
    a("v_lshlrev_b32 v10, 2, v0")
    for k in range(4):
        for w in range(4):
            a(f"ds_read_b32 v{32+k*4+w}, v10 offset:{4096+w*4096+k*1024}")
    a("s_waitcnt lgkmcnt(0)")
    for k in range(4):
        for w in range(1, 4):
            a(f"v_add_f32 v{32+k*4}, v{32+k*4}, v{32+k*4+w}")
    for k in range(4):
        a(f"s_mov_b32 s20, {WS_ACC_DN + k*1024}")
        a(f"buffer_atomic_add_f32 v{32+k*4}, v10, s[12:15], s20 offen")
    a("s_waitcnt vmcnt(0)")
    a("s_barrier")
    a("v_mov_b32 v11, 1")
    a("v_mov_b32 v12, 0")
    a("v_cmp_eq_u32 vcc, 0, v0")
    a("s_and_saveexec_b64 s[24:25], vcc")
    a("buffer_atomic_add v11, v12, s[4:7], 0 offen sc0")
    a("s_waitcnt vmcnt(0)")
    a("v_lshlrev_b32 v13, 0, v11")
    a("ds_write_b32 v12, v13")
    a("s_mov_b64 exec, s[24:25]")
    a("s_waitcnt lgkmcnt(0)")
    a("s_barrier")
    a("ds_read_b32 v13, v12")
    a("s_waitcnt lgkmcnt(0)")
    a("s_nop 0")
    a("v_readfirstlane_b32 s26, v13")
    a("s_cmp_lg_u32 s26, 55")
    a(f"s_cbranch_scc1 {name}_end")
    a("v_lshlrev_b32 v2, 4, v0")
    a(f"s_mov_b32 s20, {WS_ACC_DN}")
    a("buffer_load_dwordx4 v[24:27], v2, s[12:15], s20 offen sc1")
    a(f"s_mov_b32 s20, {WS_X1}")
    a("buffer_load_dwordx4 v[8:11], v2, s[12:15], s20 offen")
    a("v_lshrrev_b32 v3, 7, v0")
    a("v_mul_u32_u24 v3, 12288, v3")
    a("v_and_b32 v6, 127, v0")
    a("v_lshl_add_u32 v3, v6, 4, v3")
    a(f"s_mov_b32 s21, {WS_MOD + 5*2048}")
    a(f"buffer_load_dwordx4 v[28:31], v3, s[12:15], s21 offen")
    a("s_waitcnt vmcnt(0)")
    for i in range(4):
        rne(24 + i)
        a(f"v_mul_f32 v{24+i}, v{24+i}, v{28+i}")
        rne(24 + i)
        a(f"v_add_f32 v{8+i}, v{8+i}, v{24+i}")
    a("v_cvt_pk_bf16_f32 v8, v8, v9")
    a("v_cvt_pk_bf16_f32 v9, v10, v11")
    a("v_lshlrev_b32 v2, 3, v0")
    a("buffer_store_dwordx2 v[8:9], v2, s[16:19], 0 offen")
    a.label(f"{name}_end")
    a("s_endpgm")
    kernel_end(name, 112)


def main():
    hdr = []
    for line in open(REF):
        if line.startswith("; @launch"):
            break
        if line.startswith("; Override") or line.startswith("; grid="):
            continue
        hdr.append(line.rstrip("\n"))
    launches = [
        ("k2_attn_kernel", 512, 256, 33280),
        ("k3_wo_kernel", 64, 512, 36864),
        ("k4_gu_kernel", 112, 256, 41024),
        ("k5_dn_kernel", 56, 256, 20480),
    ]
    for n, g, b, l in launches:
        hdr.append(f"; @launch kernel={n} grid=({g},1,1) block=({b},1,1) lds={l}")
    hdr.append('.amdgcn_target "amdgcn-amd-amdhsa--gfx950"')
    hdr.append(".text")
    attn_kernel("k2_attn_kernel")
    wo_kernel("k3_wo_kernel")
    gu_kernel("k4_gu_kernel")
    dn_kernel("k5_dn_kernel")
    tail = ['.section .rodata,"a"']
    for n, v, s in KERNELS:
        nv = (v + 7) // 8 * 8
        tail += [".p2align 6", f".amdhsa_kernel {n}",
                 f"  .amdhsa_next_free_vgpr {nv}",
                 f"  .amdhsa_next_free_sgpr {s}",
                 f"  .amdhsa_accum_offset {nv}",
                 "  .amdhsa_group_segment_fixed_size 0",
                 "  .amdhsa_kernarg_size 112",
                 "  .amdhsa_user_sgpr_count 2",
                 "  .amdhsa_user_sgpr_kernarg_segment_ptr 1",
                 "  .amdhsa_system_sgpr_workgroup_id_x 1",
                 ".end_amdhsa_kernel"]
    open(OUT, "w").write("\n".join(hdr + a.lines + tail) + "\n")


main()
```

```python
import sys

import os
REF = "adaLN_cond__gqa_block_cached__glu_gated_bilinear__decode.s.ref"
OUT = os.environ.get("GEN_OUT", REF[:-4])
ENV = lambda k, d: type(d)(os.environ.get(k, d))

KA_X, KA_K, KA_V, KA_WQ, KA_WO, KA_BX, KA_WG, KA_WU, KA_WD, KA_C, KA_WMOD, KA_OUT, KA_DBG, KA_WS = [8 * i for i in range(14)]

WS_MOD = 0
WS_Q = 32768
WS_X1 = 49152
WS_ACC = 65536
WS_ACC_WO = 65536
WS_ACC_DN = 69632
WS_ACC_GU = 73728
WS_ACC_END = 102400
WS_PM = 131072
WS_PL = 139264
WS_PO = 262144
WS_BYTES = 0x20000000

SCALE_C = 1.4426950408889634 / (128 ** 0.5)

import struct


def f32hex(x):
    return "0x%08x" % struct.unpack("<I", struct.pack("<f", x))[0]


class Asm:
    def __init__(self):
        self.lines = []

    def __call__(self, s):
        self.lines.append("    " + s)

    def label(self, s):
        self.lines.append(s + ":")

    def raw(self, s):
        self.lines.append(s)


a = Asm()
KERNELS = []


def kernel_begin(name):
    a.raw(f".globl {name}")
    a.raw(".p2align 8")
    a.raw(f".type {name},@function")
    a.label(name)
    if name[:2] in os.environ.get("EMPTY", "").split(","):
        a("s_endpgm")


def kernel_end(name, vgprs, sgprs=96):
    KERNELS.append((name, vgprs, sgprs))


def load_ptr(dst, off):
    a(f"s_load_dwordx2 s[{dst}:{dst+1}], s[0:1], {off}")


def fin_srd(dst, nbytes):
    a(f"s_mov_b32 s{dst+2}, {nbytes}")
    a(f"s_mov_b32 s{dst+3}, 0x00020000")


def rne(v, tmp=None):
    t = v if tmp is None else tmp
    a(f"v_cvt_pk_bf16_f32 v{t}, v{v}, v{v}")
    a(f"v_lshlrev_b32 v{v}, 16, v{t}")


def wave_sum_to_sgpr(v, s, op="add"):
    opn = {"add": "v_add_f32", "max": "v_max_f32"}[op]
    for ctl in ["quad_perm:[1,0,3,2]", "quad_perm:[2,3,0,1]", "row_half_mirror", "row_mirror"]:
        a("s_nop 1")
        a(f"{opn}_dpp v{v}, v{v}, v{v} {ctl} row_mask:0xf bank_mask:0xf")
    a("s_nop 1")
    a(f"{opn}_dpp v{v}, v{v}, v{v} row_bcast:15 row_mask:0xa bank_mask:0xf")
    a("s_nop 1")
    a(f"{opn}_dpp v{v}, v{v}, v{v} row_bcast:31 row_mask:0xc bank_mask:0xf")
    a("s_nop 1")
    a(f"v_readlane_b32 s{s}, v{v}, 63")


def ln_prologue(xv, srd_ws, mod_shift, mod_scale, lds_red, vt):
    a(f"v_lshrrev_b32 v{vt}, 7, v0")
    a(f"v_mul_u32_u24 v{vt}, 12288, v{vt}")
    a(f"v_and_b32 v{vt+1}, 127, v0")
    a(f"v_lshl_add_u32 v{vt}, v{vt+1}, 4, v{vt}")
    a(f"s_mov_b32 s42, {WS_MOD + mod_shift*2048}")
    a(f"s_mov_b32 s43, {WS_MOD + mod_scale*2048}")
    a(f"buffer_load_dwordx4 v[{vt+4}:{vt+7}], v{vt}, s[{srd_ws}:{srd_ws+3}], s42 offen")
    a(f"buffer_load_dwordx4 v[{vt+8}:{vt+11}], v{vt}, s[{srd_ws}:{srd_ws+3}], s43 offen")
    a(f"v_add_f32 v{vt}, v{xv}, v{xv+1}")
    a(f"v_add_f32 v{vt+1}, v{xv+2}, v{xv+3}")
    a(f"v_add_f32 v{vt}, v{vt}, v{vt+1}")
    wave_sum_to_sgpr(vt, 40)
    a(f"v_lshrrev_b32 v{vt+1}, 6, v0")
    a(f"v_lshlrev_b32 v{vt+1}, 2, v{vt+1}")
    a(f"v_mov_b32 v{vt}, s40")
    a(f"ds_write_b32 v{vt+1}, v{vt} offset:{lds_red}")
    a("s_waitcnt lgkmcnt(0)")
    a("s_barrier")
    a(f"v_lshrrev_b32 v{vt+1}, 7, v0")
    a(f"v_lshlrev_b32 v{vt+1}, 3, v{vt+1}")
    a(f"ds_read_b64 v[{vt+2}:{vt+3}], v{vt+1} offset:{lds_red}")
    a("s_waitcnt lgkmcnt(0)")
    a(f"v_add_f32 v{vt+2}, v{vt+2}, v{vt+3}")
    a(f"v_mul_f32 v{vt+2}, {f32hex(1.0/512)}, v{vt+2}")
    for i in range(4):
        a(f"v_sub_f32 v{vt+3}, v{xv+i}, v{vt+2}")
        if i == 0:
            a(f"v_mul_f32 v{vt}, v{vt+3}, v{vt+3}")
        else:
            a(f"v_fmac_f32 v{vt}, v{vt+3}, v{vt+3}")
    wave_sum_to_sgpr(vt, 41)
    a(f"v_lshrrev_b32 v{vt+1}, 6, v0")
    a(f"v_lshlrev_b32 v{vt+1}, 2, v{vt+1}")
    a(f"v_mov_b32 v{vt}, s41")
    a(f"ds_write_b32 v{vt+1}, v{vt} offset:{lds_red+16}")
    a("s_waitcnt lgkmcnt(0)")
    a("s_barrier")
    a(f"v_lshrrev_b32 v{vt+1}, 7, v0")
    a(f"v_lshlrev_b32 v{vt+1}, 3, v{vt+1}")
    a(f"ds_read_b64 v[{vt}:{vt+1}], v{vt+1} offset:{lds_red+16}")
    a("s_waitcnt lgkmcnt(0)")
    a(f"v_add_f32 v{vt}, v{vt}, v{vt+1}")
    a(f"v_mul_f32 v{vt}, {f32hex(1.0/512)}, v{vt}")
    rne(vt)
    rne(vt + 2)
    a(f"v_add_f32 v{vt}, {f32hex(1e-5)}, v{vt}")
    rne(vt)
    a(f"v_sqrt_f32 v{vt}, v{vt}")
    a("s_nop 0")
    rne(vt)
    a(f"v_rcp_f32 v{vt}, v{vt}")
    a("s_waitcnt vmcnt(0)")
    for i in range(4):
        a(f"v_sub_f32 v{xv+i}, v{xv+i}, v{vt+2}")
        rne(xv + i)
        a(f"v_mul_f32 v{xv+i}, v{xv+i}, v{vt}")
        rne(xv + i)
        a(f"v_add_f32 v{vt+8+i}, 1.0, v{vt+8+i}")
        rne(vt + 8 + i)
        a(f"v_mul_f32 v{xv+i}, v{xv+i}, v{vt+8+i}")
        rne(xv + i)
        a(f"v_add_f32 v{xv+i}, v{xv+i}, v{vt+4+i}")
        rne(xv + i)


def unpack_x4(src_pair, dst):
    a(f"v_and_b32 v{dst+1}, 0xffff0000, v{src_pair}")
    a(f"v_lshlrev_b32 v{dst}, 16, v{src_pair}")
    a(f"v_and_b32 v{dst+3}, 0xffff0000, v{src_pair+1}")
    a(f"v_lshlrev_b32 v{dst+2}, 16, v{src_pair+1}")


def gemv_nsplit(name, which):
    nwg = 96 if which == "mod" else 128
    row_stride = 6144 if which == "mod" else 8192
    w_bytes = 512 * row_stride
    kernel_begin(name)
    a(f"s_cmp_ge_u32 s2, {nwg}")
    a(f"s_cbranch_scc1 {name}_end")
    load_ptr(8, KA_C if which == "mod" else KA_X)
    load_ptr(12, KA_WMOD if which == "mod" else KA_WQ)
    load_ptr(16, KA_WS)
    a("s_waitcnt lgkmcnt(0)")
    fin_srd(8, 2048)
    fin_srd(12, w_bytes)
    fin_srd(16, WS_BYTES)
    if which == "mod":
        nz = (WS_ACC_END - WS_ACC) // 1024
        a(f"s_cmp_ge_u32 s2, {nz}")
        a(f"s_cbranch_scc1 {name}_nozero")
        a("s_lshl_b32 s21, s2, 10")
        a("v_lshlrev_b32 v3, 2, v0")
        a("v_add_u32 v3, s21, v3")
        a("v_mov_b32 v6, 0")
        a(f"s_mov_b32 s22, {WS_ACC}")
        a("buffer_store_dword v6, v3, s[16:19], s22 offen")
        a.label(f"{name}_nozero")
    a("v_lshlrev_b32 v2, 3, v0")
    a("buffer_load_dwordx2 v[4:5], v2, s[8:11], 0 offen")
    a("v_lshrrev_b32 v1, 2, v0")
    a(f"s_mov_b32 s20, {row_stride}")
    a("v_mul_lo_u32 v1, v1, s20")
    a("v_and_b32 v2, 3, v0")
    a("v_lshl_add_u32 v1, v2, 4, v1")
    a("s_lshl_b32 s21, s2, 6")
    a("v_add_u32 v1, s21, v1")
    for it in range(8):
        a(f"s_mov_b32 s20, {it*64*row_stride}")
        a(f"buffer_load_dwordx4 v[{32+4*it}:{35+4*it}], v1, s[12:15], s20 offen {WF}")
    a("s_waitcnt vmcnt(8)")
    unpack_x4(4, 8)
    if which == "mod":
        for i in range(4):
            a(f"v_mul_f32 v12, {f32hex(-1.4426950408889634)}, v{8+i}")
            a("v_exp_f32 v12, v12")
            a("s_nop 0")
            a("v_add_f32 v12, 1.0, v12")
            a("v_rcp_f32 v12, v12")
            a("s_nop 0")
            a(f"v_mul_f32 v{8+i}, v{8+i}, v12")
            rne(8 + i)
    else:
        ln_prologue(8, 16, 0, 1, 20480, 12)
    a("v_lshlrev_b32 v2, 4, v0")
    a("ds_write_b128 v2, v[8:11]")
    a("s_waitcnt lgkmcnt(0)")
    a("s_barrier")
    a("v_lshrrev_b32 v2, 2, v0")
    a("v_lshlrev_b32 v2, 2, v2")
    for b in range(2):
        for it in range(8):
            a(f"ds_read_b32 v{80+b*8+it}, v2 offset:{(b*512+64*it)*4}")
    for i in range(16):
        a(f"v_mov_b32 v{64+i}, 0")
    a("s_waitcnt vmcnt(0) lgkmcnt(0)")
    for it in range(8):
        for q in range(4):
            src = 32 + 4 * it + q
            a(f"v_lshlrev_b32 v12, 16, v{src}")
            a(f"v_and_b32 v13, 0xffff0000, v{src}")
            for b in range(2):
                a(f"v_fmac_f32 v{64+b*8+2*q}, v12, v{80+b*8+it}")
                a(f"v_fmac_f32 v{64+b*8+2*q+1}, v13, v{80+b*8+it}")
    a("v_lshlrev_b32 v2, 6, v0")
    for i in range(4):
        a(f"ds_write_b128 v2, v[{64+4*i}:{67+4*i}] offset:{4096+16*i}")
    a("s_waitcnt lgkmcnt(0)")
    a("s_barrier")
    a("v_and_b32 v2, 63, v0")
    a("v_lshrrev_b32 v3, 5, v2")
    a("v_lshlrev_b32 v3, 5, v3")
    a("v_and_b32 v4, 7, v2")
    a("v_lshl_add_u32 v3, v4, 2, v3")
    a("v_bfe_u32 v4, v2, 3, 2")
    a("v_lshl_add_u32 v3, v4, 6, v3")
    a("v_lshrrev_b32 v4, 6, v0")
    a("v_lshl_add_u32 v3, v4, 12, v3")
    for r in range(16):
        a(f"ds_read_b32 v{32+r}, v3 offset:{4096+r*256}")
    a("s_waitcnt lgkmcnt(0)")
    for r in range(1, 16):
        a(f"v_add_f32 v32, v32, v{32+r}")
    a("v_lshlrev_b32 v3, 2, v0")
    a("ds_write_b32 v3, v32 offset:0")
    a("s_waitcnt lgkmcnt(0)")
    a("s_barrier")
    a("v_cmp_gt_u32 vcc, 64, v0")
    a("s_and_saveexec_b64 s[24:25], vcc")
    a(f"s_cbranch_execz {name}_end")
    for r in range(4):
        a(f"ds_read_b32 v{32+r}, v3 offset:{r*256}")
    a("s_waitcnt lgkmcnt(0)")
    a("v_add_f32 v32, v32, v33")
    a("v_add_f32 v34, v34, v35")
    a("v_add_f32 v32, v32, v34")
    a("v_lshrrev_b32 v4, 5, v0")
    a("v_and_b32 v5, 31, v0")
    a("s_lshl_b32 s21, s2, 5")
    a("v_add_u32 v5, s21, v5")
    if which == "mod":
        rne(32)
        a("v_mul_u32_u24 v4, 3072, v4")
        a("v_add_lshl_u32 v5, v4, v5, 2")
        a(f"buffer_store_dword v32, v5, s[16:19], 0 offen offset:{WS_MOD}")
    else:
        a("v_cvt_pk_bf16_f32 v32, v32, v32")
        a("v_lshlrev_b32 v4, 12, v4")
        a("v_add_lshl_u32 v5, v4, v5, 1")
        a(f"s_mov_b32 s22, {WS_Q}")
        a("buffer_store_short v32, v5, s[16:19], s22 offen")
    a.label(f"{name}_end")
    a("s_endpgm")
    kernel_end(name, 96)


SPIN_MAX = 200000


def wave_reduce16(acc):
    steps = [("quad_perm:[1,0,3,2]", "0xf"), ("quad_perm:[2,3,0,1]", "0xf"), ("row_half_mirror", "0xf"),
             ("row_mirror", "0xf"), ("row_bcast:15", "0xa"), ("row_bcast:31", "0xc")]
    a("s_nop 1")
    for ctl, rm in steps:
        for i in range(16):
            a(f"v_add_f32_dpp v{acc+i}, v{acc+i}, v{acc+i} {ctl} row_mask:{rm} bank_mask:0xf")
        a("s_nop 1")


def publish(cnt_off, lbl):
    a("s_waitcnt vmcnt(0)")
    a("v_mov_b32 v77, 1")
    a("v_mov_b32 v76, 0")
    a("s_mov_b64 s[24:25], exec")
    a("s_mov_b64 exec, 1")
    a(f"buffer_atomic_add v77, v76, s[36:39], 0 offen offset:{cnt_off}")
    a("s_mov_b64 exec, s[24:25]")


def poll(cnt_off, target, lbl):
    a("v_mov_b32 v76, 0")
    a("s_mov_b32 s26, 0")
    a.label(lbl)
    a(f"buffer_load_dword v77, v76, s[36:39], 0 offen offset:{cnt_off} sc1")
    a("s_waitcnt vmcnt(0)")
    a("v_readfirstlane_b32 s27, v77")
    a(f"s_cmp_ge_u32 s27, {target}")
    a(f"s_cbranch_scc1 {lbl}_ok")
    a("s_sleep 16")
    a("s_add_u32 s26, s26, 1")
    a(f"s_cmp_lt_u32 s26, {SPIN_MAX}")
    a(f"s_cbranch_scc1 {lbl}")
    a.label(f"{lbl}_ok")


def s0_worker(name):
    load_ptr(28, KA_WMOD)
    load_ptr(32, KA_C)
    a("s_waitcnt lgkmcnt(0)")
    fin_srd(28, 512 * 6144)
    fin_srd(32, 2048)
    a("v_and_b32 v3, 63, v0")
    a("v_mul_u32_u24 v99, 49152, v3")
    a("s_lshl_b32 s20, s2, 4")
    for i in range(8):
        a(f"s_add_u32 s21, s20, {i*6144}")
        a(f"buffer_load_dwordx4 v[{100+4*i}:{103+4*i}], v99, s[28:31], s21 offen nt")
    a("v_lshlrev_b32 v98, 4, v3")
    a("buffer_load_dwordx4 v[92:95], v98, s[32:35], 0 offen")
    a("buffer_load_dwordx4 v[132:135], v98, s[32:35], 0 offen offset:1024")
    a("s_waitcnt vmcnt(0)")
    for b, src in ((0, 92), (1, 132)):
        for q in range(4):
            a(f"v_lshlrev_b32 v{140+b*8+2*q}, 16, v{src+q}")
            a(f"v_and_b32 v{140+b*8+2*q+1}, 0xffff0000, v{src+q}")
    for i in range(16):
        a(f"v_mul_f32 v96, {f32hex(-1.4426950408889634)}, v{140+i}")
        a("v_exp_f32 v96, v96")
        a("s_nop 0")
        a("v_add_f32 v96, 1.0, v96")
        a("v_rcp_f32 v96, v96")
        a("s_nop 0")
        a(f"v_mul_f32 v{140+i}, v{140+i}, v96")
        rne(140 + i)
    gemv8(100, 140, 160)
    for i in range(16):
        rne(160 + i)
    a("s_lshl_b32 s20, s2, 5")
    a(f"s_add_u32 s21, s20, {WS_MOD + 12288}")
    a(f"s_add_u32 s20, s20, {WS_MOD}")
    a("v_mov_b32 v76, 0")
    a("s_mov_b64 s[24:25], exec")
    a("s_mov_b32 exec_lo, 0")
    a("s_mov_b32 exec_hi, 0x80000000")
    a("buffer_store_dwordx4 v[160:163], v76, s[12:15], s20 offen sc1")
    a("buffer_store_dwordx4 v[164:167], v76, s[12:15], s20 offen offset:16 sc1")
    a("buffer_store_dwordx4 v[168:171], v76, s[12:15], s21 offen sc1")
    a("buffer_store_dwordx4 v[172:175], v76, s[12:15], s21 offen offset:16 sc1")
    a("s_mov_b64 exec, s[24:25]")
    a("s_cmp_ge_u32 s2, 128")
    a(f"s_cbranch_scc1 {name}_s0done")
    publish(0, f"{name}_pa")
    a.label(f"{name}_s0done")


def gemv8(wreg, hreg, acc):
    for i in range(16):
        a(f"v_mov_b32 v{acc+i}, 0")
    for i in range(8):
        for q in range(4):
            src = wreg + 4 * i + q
            a(f"v_lshlrev_b32 v96, 16, v{src}")
            a(f"v_and_b32 v97, 0xffff0000, v{src}")
            for b in range(2):
                a(f"v_fmac_f32 v{acc+b*8+2*q}, v96, v{hreg+b*8+i}")
                a(f"v_fmac_f32 v{acc+b*8+2*q+1}, v97, v{hreg+b*8+i}")
    wave_reduce16(acc)


def s1_worker(name):
    load_ptr(28, KA_WQ)
    load_ptr(32, KA_X)
    a("s_waitcnt lgkmcnt(0)")
    fin_srd(28, 512 * 8192)
    fin_srd(32, 2048)
    a("v_and_b32 v3, 63, v0")
    a("v_lshlrev_b32 v99, 16, v3")
    a("s_lshl_b32 s20, s2, 4")
    for i in range(8):
        a(f"s_add_u32 s21, s20, {i*8192}")
        a(f"buffer_load_dwordx4 v[{100+4*i}:{103+4*i}], v99, s[28:31], s21 offen nt")
    a("v_lshlrev_b32 v98, 4, v3")
    a("buffer_load_dwordx4 v[92:95], v98, s[32:35], 0 offen")
    a("buffer_load_dwordx4 v[132:135], v98, s[32:35], 0 offen offset:1024")
    poll(0, 128, f"{name}_polla")
    a("v_lshlrev_b32 v98, 5, v3")
    for b in range(2):
        a(f"s_mov_b32 s20, {WS_MOD + b*12288}")
        a(f"buffer_load_dwordx4 v[{176+b*8}:{179+b*8}], v98, s[12:15], s20 offen sc1")
        a(f"buffer_load_dwordx4 v[{180+b*8}:{183+b*8}], v98, s[12:15], s20 offen offset:16 sc1")
        a(f"buffer_load_dwordx4 v[{192+b*8}:{195+b*8}], v98, s[12:15], s20 offen offset:2048 sc1")
        a(f"buffer_load_dwordx4 v[{196+b*8}:{199+b*8}], v98, s[12:15], s20 offen offset:2064 sc1")
    for b, src in ((0, 92), (1, 132)):
        for q in range(4):
            a(f"v_lshlrev_b32 v{140+b*8+2*q}, 16, v{src+q}")
            a(f"v_and_b32 v{140+b*8+2*q+1}, 0xffff0000, v{src+q}")
    for b in range(2):
        x0 = 140 + b * 8
        a(f"v_add_f32 v96, v{x0}, v{x0+1}")
        for i in range(2, 8):
            a(f"v_add_f32 v96, v96, v{x0+i}")
        wave_sum_to_sgpr(96, 40)
        a(f"v_mov_b32 v97, {f32hex(1.0/512)}")
        a("s_nop 1")
        a("v_mul_f32 v97, s40, v97")
        for i in range(8):
            a(f"v_sub_f32 v95, v{x0+i}, v97")
            if i == 0:
                a("v_mul_f32 v96, v95, v95")
            else:
                a("v_fmac_f32 v96, v95, v95")
        wave_sum_to_sgpr(96, 41)
        a(f"v_mov_b32 v96, {f32hex(1.0/512)}")
        a("s_nop 1")
        a("v_mul_f32 v96, s41, v96")
        rne(96)
        rne(97)
        a(f"v_add_f32 v96, {f32hex(1e-5)}, v96")
        rne(96)
        a("v_sqrt_f32 v96, v96")
        a("s_nop 0")
        rne(96)
        a("v_rcp_f32 v96, v96")
        a("s_waitcnt vmcnt(0)")
        for i in range(8):
            a(f"v_sub_f32 v{x0+i}, v{x0+i}, v97")
            rne(x0 + i)
            a(f"v_mul_f32 v{x0+i}, v{x0+i}, v96")
            rne(x0 + i)
            a(f"v_add_f32 v{192+b*8+i}, 1.0, v{192+b*8+i}")
            rne(192 + b * 8 + i)
            a(f"v_mul_f32 v{x0+i}, v{x0+i}, v{192+b*8+i}")
            rne(x0 + i)
            a(f"v_add_f32 v{x0+i}, v{x0+i}, v{176+b*8+i}")
            rne(x0 + i)
    gemv8(100, 140, 160)
    for b in range(2):
        for q in range(4):
            a(f"v_cvt_pk_bf16_f32 v{176+b*4+q}, v{160+b*8+2*q}, v{160+b*8+2*q+1}")
    a("s_lshl_b32 s20, s2, 4")
    a(f"s_add_u32 s21, s20, {WS_Q + 8192}")
    a(f"s_add_u32 s20, s20, {WS_Q}")
    a("v_mov_b32 v76, 0")
    a("s_mov_b64 s[24:25], exec")
    a("s_mov_b32 exec_lo, 0")
    a("s_mov_b32 exec_hi, 0x80000000")
    a("buffer_store_dwordx4 v[176:179], v76, s[12:15], s20 offen sc1")
    a("buffer_store_dwordx4 v[180:183], v76, s[12:15], s21 offen sc1")
    a("s_mov_b64 exec, s[24:25]")
    publish(4, f"{name}_pb")


D = ENV("K2_D", 4)
K2_FLAGS = ENV("K2_FLAGS", "nt")
K2_NOCOMP = ENV("K2_NOCOMP", 0)
WF = ENV("W_FLAGS", "")
NT = 16
VQ = 4
VO = 20
VS = 52
VP = 56
VM, VL, VT, VA = 60, 61, 62, 63
VF = 64
VMC = 72
VK = 80
VV = VK + 16 * D


def attn_kernel(name):
    kernel_begin(name)
    a("s_cmp_ge_u32 s2, 512")
    a(f"s_cbranch_scc1 {name}_end")
    load_ptr(4, KA_K)
    load_ptr(8, KA_V)
    load_ptr(12, KA_WS)
    load_ptr(36, KA_DBG)
    a("v_lshrrev_b32 v3, 6, v0")
    a("s_nop 0")
    a("v_readfirstlane_b32 s16, v3")
    a("s_waitcnt lgkmcnt(0)")
    fin_srd(4, 134217728)
    fin_srd(8, 134217728)
    fin_srd(12, WS_BYTES)
    fin_srd(36, 256)
    a("s_cmp_eq_u32 s16, 0")
    a(f"s_cbranch_scc0 {name}_not1")
    s1_worker(name)
    a(f"s_branch {name}_roles")
    a.label(f"{name}_not1")
    a("s_cmp_eq_u32 s16, 1")
    a(f"s_cbranch_scc0 {name}_not0")
    a("s_cmp_ge_u32 s2, 384")
    a(f"s_cbranch_scc1 {name}_roles")
    s0_worker(name)
    a(f"s_branch {name}_roles")
    a.label(f"{name}_not0")
    a("s_cmp_eq_u32 s16, 3")
    a(f"s_cbranch_scc0 {name}_roles")
    a(f"s_cmp_ge_u32 s2, {(WS_ACC_END - WS_ACC) // 256}")
    a(f"s_cbranch_scc1 {name}_roles")
    a("s_lshl_b32 s20, s2, 8")
    a(f"s_add_u32 s20, s20, {WS_ACC}")
    a("v_and_b32 v3, 63, v0")
    a("v_lshlrev_b32 v3, 2, v3")
    a("v_mov_b32 v4, 0")
    a("buffer_store_dword v4, v3, s[12:15], s20 offen")
    a.label(f"{name}_roles")
    a("s_lshl_b32 s17, s2, 18")
    a("s_lshl_b32 s18, s16, 16")
    a("s_add_u32 s17, s17, s18")
    a("v_and_b32 v3, 63, v0")
    a("v_and_b32 v1, 15, v3")
    a("v_lshlrev_b32 v1, 8, v1")
    a("v_lshrrev_b32 v2, 4, v3")
    a("v_lshl_add_u32 v1, v2, 4, v1")
    a("v_lshlrev_b32 v2, 10, v2")
    a("v_and_b32 v73, 15, v3")
    a("v_lshl_add_u32 v2, v73, 4, v2")
    def issue_k(t):
        buf = VK + 16 * (t % D)
        a(f"s_add_u32 s18, s17, {t*4096}")
        for j in range(4):
            a(f"buffer_load_dwordx4 v[{buf+4*j}:{buf+4*j+3}], v1, s[4:7], s18 offen offset:{64*j} {K2_FLAGS}")

    def issue_v(t):
        buf = VV + 16 * (t % D)
        a(f"s_add_u32 s19, s17, {t*4096}")
        for j in range(4):
            a(f"buffer_load_dwordx4 v[{buf+4*j}:{buf+4*j+3}], v2, s[8:11], s19 offen offset:{256*j} {K2_FLAGS}")

    for t in range(D):
        issue_k(t)
        issue_v(t)
    a("s_cmp_eq_u32 s16, 0")
    a(f"s_cbranch_scc0 {name}_nopoll")
    poll(4, 512, f"{name}_pollb")
    a.label(f"{name}_nopoll")
    a("s_barrier")
    a("s_lshr_b32 s20, s2, 5")
    a("s_lshl_b32 s20, s20, 10")
    a(f"s_add_u32 s20, s20, {WS_Q}")
    a("v_and_b32 v73, 15, v3")
    a("v_lshlrev_b32 v74, 8, v73")
    a("v_lshrrev_b32 v75, 4, v3")
    a("v_lshl_add_u32 v74, v75, 4, v74")
    a("v_mov_b32 v75, 0x40000000")
    a("v_cmp_gt_u32 vcc, 4, v73")
    a("s_nop 1")
    a("v_cndmask_b32 v74, v75, v74, vcc")
    for j in range(4):
        a(f"buffer_load_dwordx4 v[{VQ+4*j}:{VQ+4*j+3}], v74, s[12:15], s20 offen offset:{64*j} sc1")
    a("s_waitcnt vmcnt(0)")
    for i in range(32):
        a(f"v_mov_b32 v{VO+i}, 0")
    a(f"v_mov_b32 v{VM}, 0xff800000")
    a(f"v_mov_b32 v{VL}, 0")
    a(f"s_mov_b32 s21, {f32hex(SCALE_C)}")
    for t in range(NT):
        kb = VK + 16 * (t % D)
        vb = VV + 16 * (t % D)
        after_k = 4 + 8 * (min(NT, t + D) - t - 1)
        a(f"s_waitcnt vmcnt({after_k})")
        a(f"v_mfma_f32_16x16x32_bf16 v[{VS}:{VS+3}], v[{kb}:{kb+3}], v[{VQ}:{VQ+3}], 0")
        for j in range(1, 4):
            a(f"v_mfma_f32_16x16x32_bf16 v[{VS}:{VS+3}], v[{kb+4*j}:{kb+4*j+3}], v[{VQ+4*j}:{VQ+4*j+3}], v[{VS}:{VS+3}]")
        if t + D < NT:
            issue_k(t + D)
            a("s_nop 3")
        else:
            a("s_nop 7")
        a("s_nop 1")
        a(f"v_max3_f32 v{VT}, v{VS}, v{VS+1}, v{VS+2}")
        a(f"v_max3_f32 v{VT}, v{VT}, v{VS+3}, v{VM}")
        a(f"v_cmp_gt_f32 vcc, v{VT}, v{VM}")
        a("s_nop 1")
        a(f"s_cbranch_vccz {name}_nr{t}")
        a(f"v_sub_f32 v{VA}, v{VM}, v{VT}")
        a(f"v_mul_f32 v{VA}, s21, v{VA}")
        a(f"v_exp_f32 v{VA}, v{VA}")
        a(f"v_mov_b32 v{VM}, v{VT}")
        a(f"v_mul_f32 v{VL}, v{VL}, v{VA}")
        a("s_nop 0")
        for h in range(4):
            for e in range(8):
                a(f"v_mul_f32_dpp v{VO+h*8+e}, v{VA}, v{VO+h*8+e} row_newbcast:{h} row_mask:0xf bank_mask:0xf")
        a.label(f"{name}_nr{t}")
        a(f"v_mul_f32 v{VMC}, s21, v{VM}")
        for i in range(4):
            a(f"v_fma_f32 v{VP+i}, v{VS+i}, s21, -v{VMC}")
        for i in range(4):
            a(f"v_exp_f32 v{VP+i}, v{VP+i}")
        after_v = 8 * (min(NT, t + D) - t - 1) + (4 if t + D < NT else 0)
        a(f"s_waitcnt vmcnt({after_v})")
        a(f"v_add_f32 v{VT}, v{VP}, v{VP+1}")
        a(f"v_add_f32 v{VA}, v{VP+2}, v{VP+3}")
        a(f"v_add_f32 v{VL}, v{VL}, v{VT}")
        a(f"v_add_f32 v{VL}, v{VL}, v{VA}")
        for j in range(4):
            for q in range(4):
                a(f"v_lshlrev_b32 v{VF+2*q}, 16, v{vb+4*j+q}")
                a(f"v_and_b32 v{VF+2*q+1}, 0xffff0000, v{vb+4*j+q}")
            for h in range(4):
                for e in range(8):
                    a(f"v_fmac_f32_dpp v{VO+h*8+e}, v{VP+j}, v{VF+e} row_newbcast:{h} row_mask:0xf bank_mask:0xf")
        if t + D < NT:
            issue_v(t + D)
    a("v_lshrrev_b32 v1, 4, v0")
    a("v_lshlrev_b32 v2, 11, v1")
    a("v_and_b32 v3, 15, v0")
    a("v_lshl_add_u32 v2, v3, 5, v2")
    for h in range(4):
        a(f"ds_write_b128 v2, v[{VO+h*8}:{VO+h*8+3}] offset:{h*512}")
        a(f"ds_write_b128 v2, v[{VO+h*8+4}:{VO+h*8+7}] offset:{h*512+16}")
    a("v_lshlrev_b32 v2, 5, v1")
    a("v_lshl_add_u32 v2, v3, 3, v2")
    a("v_cmp_gt_u32 vcc, 4, v3")
    a("s_and_saveexec_b64 s[24:25], vcc")
    a(f"ds_write_b64 v2, v[{VM}:{VL}] offset:32768")
    a("s_mov_b64 exec, s[24:25]")
    a("s_waitcnt lgkmcnt(0)")
    a("s_barrier")
    a("v_lshrrev_b32 v1, 6, v0")
    a("v_lshlrev_b32 v2, 3, v1")
    for s in range(16):
        a(f"ds_read_b64 v[{80+2*s}:{81+2*s}], v2 offset:{32768+s*32}")
    a("v_and_b32 v3, 63, v0")
    a("v_lshlrev_b32 v3, 3, v3")
    a("v_lshl_add_u32 v3, v1, 9, v3")
    for s in range(16):
        a(f"ds_read_b64 v[{120+2*s}:{121+2*s}], v3 offset:{s*2048}")
    a("s_waitcnt lgkmcnt(0)")
    a("v_max_f32 v4, v80, v82")
    for s in range(2, 16):
        a(f"v_max_f32 v4, v4, v{80+2*s}")
    a("v_mov_b32 v5, 0")
    a("v_mov_b32 v6, 0")
    a("v_mov_b32 v7, 0")
    for s in range(16):
        a(f"v_sub_f32 v8, v{80+2*s}, v4")
        a("v_mul_f32 v8, s21, v8")
        a("v_exp_f32 v8, v8")
        a("s_nop 0")
        a(f"v_fmac_f32 v5, v8, v{81+2*s}")
        a(f"v_fmac_f32 v6, v8, v{120+2*s}")
        a(f"v_fmac_f32 v7, v8, v{121+2*s}")
    a("s_lshl_b32 s20, s2, 11")
    a(f"s_add_u32 s20, s20, {WS_PO}")
    a("buffer_store_dwordx2 v[6:7], v3, s[12:15], s20 offen")
    a("v_and_b32 v9, 63, v0")
    a("v_cmp_eq_u32 vcc, 0, v9")
    a("s_and_saveexec_b64 s[24:25], vcc")
    a("s_lshr_b32 s20, s2, 5")
    a("s_lshl_b32 s20, s20, 9")
    a("s_and_b32 s22, s2, 31")
    a("s_lshl_b32 s22, s22, 2")
    a("s_add_u32 s20, s20, s22")
    a(f"s_add_u32 s22, s20, {WS_PL}")
    a(f"s_add_u32 s20, s20, {WS_PM}")
    a("v_lshlrev_b32 v1, 7, v1")
    a("buffer_store_dword v4, v1, s[12:15], s20 offen")
    a("buffer_store_dword v5, v1, s[12:15], s22 offen")
    a.label(f"{name}_end")
    a("s_endpgm")
    kernel_end(name, VV + 16 * D)


def wo_kernel(name):
    kernel_begin(name)
    a("s_cmp_ge_u32 s2, 64")
    a(f"s_cbranch_scc1 {name}_end")
    load_ptr(8, KA_WO)
    load_ptr(12, KA_WS)
    a("s_waitcnt lgkmcnt(0)")
    fin_srd(8, 4194304)
    fin_srd(12, WS_BYTES)
    a("v_lshrrev_b32 v1, 6, v0")
    a("v_lshlrev_b32 v1, 13, v1")
    a("v_and_b32 v2, 63, v0")
    a("v_lshl_add_u32 v1, v2, 4, v1")
    a("s_lshl_b32 s20, s2, 16")
    a("s_add_u32 s21, s20, 4096")
    for it in range(8):
        a(f"buffer_load_dwordx4 v[{32+4*it}:{35+4*it}], v1, s[8:11], s{20 if it < 4 else 21} offen offset:{(it%4)*1024} {WF}")
    a("s_lshr_b32 s22, s2, 1")
    a("s_lshr_b32 s23, s22, 2")
    a("s_and_b32 s24, s22, 3")
    a("s_lshl_b32 s25, s23, 9")
    a("s_lshl_b32 s26, s24, 7")
    a("s_add_u32 s25, s25, s26")
    a("v_lshrrev_b32 v3, 8, v0")
    a("v_lshlrev_b32 v4, 12, v3")
    a(f"s_add_u32 s26, s25, {WS_PM}")
    a(f"s_add_u32 s27, s25, {WS_PL}")
    for i in range(8):
        a(f"buffer_load_dwordx4 v[{64+4*i}:{67+4*i}], v4, s[12:15], s26 offen offset:{16*i}")
    for i in range(8):
        a(f"buffer_load_dwordx4 v[{96+4*i}:{99+4*i}], v4, s[12:15], s27 offen offset:{16*i}")
    a("s_lshl_b32 s25, s23, 16")
    a("s_lshl_b32 s26, s24, 9")
    a("s_add_u32 s25, s25, s26")
    a("s_and_b32 s26, s2, 1")
    a("s_lshl_b32 s26, s26, 8")
    a("s_add_u32 s25, s25, s26")
    a(f"s_add_u32 s25, s25, {WS_PO}")
    a("v_lshlrev_b32 v5, 19, v3")
    a("v_bfe_u32 v6, v0, 6, 2")
    a("v_lshl_add_u32 v5, v6, 14, v5")
    a("v_lshl_add_u32 v5, v2, 2, v5")
    for i in range(8):
        a(f"s_add_u32 s26, s25, {i*2048}")
        a(f"buffer_load_dword v{128+i}, v5, s[12:15], s26 offen")
    a(f"s_mov_b32 s28, {f32hex(SCALE_C)}")
    a("s_waitcnt vmcnt(8)")
    a("v_max_f32 v7, v64, v65")
    for s in range(2, 32):
        a(f"v_max_f32 v7, v7, v{64+s}")
    a("v_mov_b32 v8, 0")
    for s in range(32):
        a(f"v_sub_f32 v{64+s}, v{64+s}, v7")
        a(f"v_mul_f32 v{64+s}, s28, v{64+s}")
        a(f"v_exp_f32 v{64+s}, v{64+s}")
        a("s_nop 0")
        a(f"v_fmac_f32 v8, v{64+s}, v{96+s}")
    for i in range(8):
        a(f"v_mov_b32 v{136+i}, v{64+i}")
    for sq in range(1, 4):
        a(f"v_cmp_eq_u32 vcc, {sq}, v6")
        a("s_nop 1")
        for i in range(8):
            a(f"v_cndmask_b32 v{136+i}, v{136+i}, v{64+sq*8+i}, vcc")
    a("s_waitcnt vmcnt(0)")
    a("v_mul_f32 v9, v136, v128")
    for i in range(1, 8):
        a(f"v_fmac_f32 v9, v{136+i}, v{128+i}")
    a("v_lshlrev_b32 v10, 2, v0")
    a("ds_write_b32 v10, v9")
    a("s_waitcnt lgkmcnt(0)")
    a("s_barrier")
    a("v_lshlrev_b32 v10, 10, v3")
    a("v_lshl_add_u32 v10, v2, 2, v10")
    a("ds_read_b32 v11, v10 offset:0")
    a("ds_read_b32 v12, v10 offset:256")
    a("ds_read_b32 v13, v10 offset:512")
    a("ds_read_b32 v14, v10 offset:768")
    a("v_rcp_f32 v8, v8")
    a("s_waitcnt lgkmcnt(0)")
    a("v_add_f32 v11, v11, v12")
    a("v_add_f32 v13, v13, v14")
    a("v_add_f32 v11, v11, v13")
    a("v_mul_f32 v11, v11, v8")
    rne(11)
    a("v_lshlrev_b32 v10, 8, v3")
    a("v_lshl_add_u32 v10, v2, 2, v10")
    a("ds_write_b32 v10, v11 offset:2048")
    a("s_waitcnt lgkmcnt(0)")
    a("s_barrier")
    a("v_lshrrev_b32 v10, 6, v0")
    a("v_lshlrev_b32 v10, 5, v10")
    for b in range(2):
        for it in range(8):
            a(f"ds_read_b32 v{144+b*8+it}, v10 offset:{2048+b*256+it*4}")
    for i in range(16):
        a(f"v_mov_b32 v{160+i}, 0")
    a("s_waitcnt lgkmcnt(0)")
    for it in range(8):
        for q in range(4):
            src = 32 + 4 * it + q
            a(f"v_lshlrev_b32 v12, 16, v{src}")
            a(f"v_and_b32 v13, 0xffff0000, v{src}")
            for b in range(2):
                a(f"v_fmac_f32 v{160+b*8+2*q}, v12, v{144+b*8+it}")
                a(f"v_fmac_f32 v{160+b*8+2*q+1}, v13, v{144+b*8+it}")
    a("v_lshrrev_b32 v10, 6, v0")
    a("v_lshlrev_b32 v10, 12, v10")
    a("v_lshl_add_u32 v10, v2, 5, v10")
    for b in range(2):
        a(f"ds_write_b128 v10, v[{160+b*8}:{163+b*8}] offset:{4096+b*2048}")
        a(f"ds_write_b128 v10, v[{164+b*8}:{167+b*8}] offset:{4096+b*2048+16}")
    a("s_waitcnt lgkmcnt(0)")
    a("s_barrier")
    a("v_lshlrev_b32 v10, 2, v0")
    for b in range(2):
        for w in range(8):
            a(f"ds_read_b32 v{32+b*8+w}, v10 offset:{4096+w*4096+b*2048}")
    a("s_waitcnt lgkmcnt(0)")
    for b in range(2):
        for w in range(1, 8):
            a(f"v_add_f32 v{32+b*8}, v{32+b*8}, v{32+b*8+w}")
    a(f"s_mov_b32 s20, {WS_ACC_WO}")
    a(f"s_mov_b32 s21, {WS_ACC_WO+2048}")
    a("buffer_atomic_add_f32 v32, v10, s[12:15], s20 offen")
    a("buffer_atomic_add_f32 v40, v10, s[12:15], s21 offen")
    a.label(f"{name}_end")
    a("s_endpgm")
    kernel_end(name, 176)


def gu_kernel(name):
    kernel_begin(name)
    a("s_cmp_ge_u32 s2, 112")
    a(f"s_cbranch_scc1 {name}_end")
    load_ptr(4, KA_X)
    load_ptr(8, KA_WG)
    load_ptr(16, KA_WU)
    load_ptr(12, KA_WS)
    a("s_waitcnt lgkmcnt(0)")
    fin_srd(4, 2048)
    fin_srd(8, 512 * 3584)
    fin_srd(16, 512 * 3584)
    fin_srd(12, WS_BYTES)
    a("s_mul_i32 s20, s2, 9363")
    a("s_lshr_b32 s20, s20, 16")
    a("s_mul_i32 s21, s20, 7")
    a("s_sub_u32 s21, s2, s21")
    a("s_lshl_b32 s22, s20, 5")
    a("v_lshrrev_b32 v1, 5, v0")
    a("v_add_u32 v1, s22, v1")
    a("s_movk_i32 s23, 3584")
    a("v_mul_lo_u32 v1, v1, s23")
    a("v_and_b32 v2, 31, v0")
    a("v_lshl_add_u32 v1, v2, 4, v1")
    a("s_lshl_b32 s23, s21, 9")
    a("v_add_u32 v1, s23, v1")
    for it in range(4):
        a(f"s_mov_b32 s24, {it*8*3584}")
        a(f"buffer_load_dwordx4 v[{32+4*it}:{35+4*it}], v1, s[8:11], s24 offen {WF}")
        a(f"buffer_load_dwordx4 v[{48+4*it}:{51+4*it}], v1, s[16:19], s24 offen {WF}")
    a("v_lshlrev_b32 v2, 3, v0")
    a("buffer_load_dwordx2 v[4:5], v2, s[4:7], 0 offen")
    a("v_lshlrev_b32 v2, 4, v0")
    a(f"s_mov_b32 s24, {WS_ACC_WO}")
    a("buffer_load_dwordx4 v[24:27], v2, s[12:15], s24 offen")
    a("v_lshrrev_b32 v3, 7, v0")
    a("v_mul_u32_u24 v3, 12288, v3")
    a("v_and_b32 v6, 127, v0")
    a("v_lshl_add_u32 v3, v6, 4, v3")
    a(f"s_mov_b32 s25, {WS_MOD + 2*2048}")
    a(f"buffer_load_dwordx4 v[28:31], v3, s[12:15], s25 offen")
    a("s_waitcnt vmcnt(0)")
    unpack_x4(4, 8)
    for i in range(4):
        rne(24 + i)
        a(f"v_mul_f32 v{24+i}, v{24+i}, v{28+i}")
        rne(24 + i)
        a(f"v_add_f32 v{8+i}, v{8+i}, v{24+i}")
        rne(8 + i)
    a("s_cmp_lg_u32 s2, 0")
    a(f"s_cbranch_scc1 {name}_nox1")
    a(f"s_mov_b32 s24, {WS_X1}")
    a("buffer_store_dwordx4 v[8:11], v2, s[12:15], s24 offen")
    a.label(f"{name}_nox1")
    ln_prologue(8, 12, 3, 4, 40960, 12)
    a("v_lshlrev_b32 v2, 4, v0")
    a("ds_write_b128 v2, v[8:11]")
    a("s_waitcnt lgkmcnt(0)")
    a("s_barrier")
    a("v_lshrrev_b32 v2, 5, v0")
    a("v_add_lshl_u32 v2, s22, v2, 2")
    for b in range(2):
        for it in range(4):
            a(f"ds_read_b32 v{80+b*4+it}, v2 offset:{(b*512+8*it)*4}")
    for i in range(32):
        a(f"v_mov_b32 v{96+i}, 0")
    a("s_waitcnt lgkmcnt(0)")
    for m in range(2):
        for it in range(4):
            for q in range(4):
                src = 32 + 16 * m + 4 * it + q
                a(f"v_lshlrev_b32 v12, 16, v{src}")
                a(f"v_and_b32 v13, 0xffff0000, v{src}")
                for b in range(2):
                    a(f"v_fmac_f32 v{96+m*16+b*8+2*q}, v12, v{80+b*4+it}")
                    a(f"v_fmac_f32 v{96+m*16+b*8+2*q+1}, v13, v{80+b*4+it}")
    a("v_lshrrev_b32 v2, 5, v0")
    a("v_lshlrev_b32 v2, 12, v2")
    a("v_and_b32 v3, 31, v0")
    a("v_lshl_add_u32 v2, v3, 5, v2")
    for mb in range(4):
        a(f"ds_write_b128 v2, v[{96+mb*8}:{99+mb*8}] offset:{4096+mb*1024}")
        a(f"ds_write_b128 v2, v[{100+mb*8}:{103+mb*8}] offset:{4096+mb*1024+16}")
    a("s_waitcnt lgkmcnt(0)")
    a("s_barrier")
    a("v_lshlrev_b32 v2, 2, v0")
    for mb in range(4):
        for r in range(8):
            a(f"ds_read_b32 v{32+mb*8+r}, v2 offset:{4096+r*4096+mb*1024}")
    a("s_waitcnt lgkmcnt(0)")
    for mb in range(4):
        for r in range(1, 8):
            a(f"v_add_f32 v{32+mb*8}, v{32+mb*8}, v{32+mb*8+r}")
    a("s_lshl_b32 s23, s21, 10")
    for mb in range(4):
        a(f"s_add_u32 s24, s23, {WS_ACC_GU + mb*1792*4}")
        a(f"buffer_atomic_add_f32 v{32+mb*8}, v2, s[12:15], s24 offen")
    a.label(f"{name}_end")
    a("s_endpgm")
    kernel_end(name, 128)


def dn_kernel(name):
    kernel_begin(name)
    a("s_cmp_ge_u32 s2, 56")
    a(f"s_cbranch_scc1 {name}_end")
    load_ptr(8, KA_WD)
    load_ptr(12, KA_WS)
    load_ptr(16, KA_OUT)
    load_ptr(4, KA_DBG)
    a("s_waitcnt lgkmcnt(0)")
    fin_srd(8, 1792 * 1024)
    fin_srd(12, WS_BYTES)
    fin_srd(16, 2048)
    fin_srd(4, 256)
    a("v_lshrrev_b32 v1, 6, v0")
    a("v_lshlrev_b32 v1, 13, v1")
    a("v_and_b32 v2, 63, v0")
    a("v_lshl_add_u32 v1, v2, 4, v1")
    a("s_lshl_b32 s20, s2, 15")
    a("s_add_u32 s21, s20, 4096")
    for it in range(8):
        a(f"buffer_load_dwordx4 v[{32+4*it}:{35+4*it}], v1, s[8:11], s{20 if it < 4 else 21} offen offset:{(it%4)*1024} {WF}")
    a("v_lshrrev_b32 v3, 5, v0")
    a("v_mul_u32_u24 v3, 7168, v3")
    a("v_and_b32 v4, 31, v0")
    a("v_lshl_add_u32 v3, v4, 2, v3")
    a("s_lshl_b32 s22, s2, 7")
    a(f"s_add_u32 s23, s22, {WS_ACC_GU + 2*1792*4}")
    a(f"s_add_u32 s22, s22, {WS_ACC_GU}")
    a("v_cmp_gt_u32 vcc, 64, v0")
    a("s_and_saveexec_b64 s[24:25], vcc")
    a("buffer_load_dword v5, v3, s[12:15], s22 offen")
    a("buffer_load_dword v6, v3, s[12:15], s23 offen")
    a("s_waitcnt vmcnt(0)")
    rne(5)
    rne(6)
    a("v_mul_f32 v5, v5, v6")
    rne(5)
    a("v_lshlrev_b32 v4, 2, v0")
    a("ds_write_b32 v4, v5")
    a("s_mov_b64 exec, s[24:25]")
    a("s_waitcnt lgkmcnt(0)")
    a("s_barrier")
    a("v_lshrrev_b32 v10, 6, v0")
    a("v_lshlrev_b32 v10, 5, v10")
    for b in range(2):
        for it in range(8):
            a(f"ds_read_b32 v{80+b*8+it}, v10 offset:{b*128+it*4}")
    for i in range(16):
        a(f"v_mov_b32 v{96+i}, 0")
    a("s_waitcnt vmcnt(0) lgkmcnt(0)")
    for it in range(8):
        for q in range(4):
            src = 32 + 4 * it + q
            a(f"v_lshlrev_b32 v12, 16, v{src}")
            a(f"v_and_b32 v13, 0xffff0000, v{src}")
            for b in range(2):
                a(f"v_fmac_f32 v{96+b*8+2*q}, v12, v{80+b*8+it}")
                a(f"v_fmac_f32 v{96+b*8+2*q+1}, v13, v{80+b*8+it}")
    a("v_lshrrev_b32 v10, 6, v0")
    a("v_lshlrev_b32 v10, 12, v10")
    a("v_lshl_add_u32 v10, v2, 5, v10")
    for b in range(2):
        a(f"ds_write_b128 v10, v[{96+b*8}:{99+b*8}] offset:{4096+b*2048}")
        a(f"ds_write_b128 v10, v[{100+b*8}:{103+b*8}] offset:{4096+b*2048+16}")
    a("s_waitcnt lgkmcnt(0)")
    a("s_barrier")
    a("v_lshlrev_b32 v10, 2, v0")
    for k in range(4):
        for w in range(4):
            a(f"ds_read_b32 v{32+k*4+w}, v10 offset:{4096+w*4096+k*1024}")
    a("s_waitcnt lgkmcnt(0)")
    for k in range(4):
        for w in range(1, 4):
            a(f"v_add_f32 v{32+k*4}, v{32+k*4}, v{32+k*4+w}")
    for k in range(4):
        a(f"s_mov_b32 s20, {WS_ACC_DN + k*1024}")
        a(f"buffer_atomic_add_f32 v{32+k*4}, v10, s[12:15], s20 offen")
    a("s_waitcnt vmcnt(0)")
    a("s_barrier")
    a("v_mov_b32 v11, 1")
    a("v_mov_b32 v12, 0")
    a("v_cmp_eq_u32 vcc, 0, v0")
    a("s_and_saveexec_b64 s[24:25], vcc")
    a("buffer_atomic_add v11, v12, s[4:7], 0 offen sc0")
    a("s_waitcnt vmcnt(0)")
    a("v_lshlrev_b32 v13, 0, v11")
    a("ds_write_b32 v12, v13")
    a("s_mov_b64 exec, s[24:25]")
    a("s_waitcnt lgkmcnt(0)")
    a("s_barrier")
    a("ds_read_b32 v13, v12")
    a("s_waitcnt lgkmcnt(0)")
    a("s_nop 0")
    a("v_readfirstlane_b32 s26, v13")
    a("s_cmp_lg_u32 s26, 55")
    a(f"s_cbranch_scc1 {name}_end")
    a("v_lshlrev_b32 v2, 4, v0")
    a(f"s_mov_b32 s20, {WS_ACC_DN}")
    a("buffer_load_dwordx4 v[24:27], v2, s[12:15], s20 offen sc1")
    a(f"s_mov_b32 s20, {WS_X1}")
    a("buffer_load_dwordx4 v[8:11], v2, s[12:15], s20 offen")
    a("v_lshrrev_b32 v3, 7, v0")
    a("v_mul_u32_u24 v3, 12288, v3")
    a("v_and_b32 v6, 127, v0")
    a("v_lshl_add_u32 v3, v6, 4, v3")
    a(f"s_mov_b32 s21, {WS_MOD + 5*2048}")
    a(f"buffer_load_dwordx4 v[28:31], v3, s[12:15], s21 offen")
    a("s_waitcnt vmcnt(0)")
    for i in range(4):
        rne(24 + i)
        a(f"v_mul_f32 v{24+i}, v{24+i}, v{28+i}")
        rne(24 + i)
        a(f"v_add_f32 v{8+i}, v{8+i}, v{24+i}")
    a("v_cvt_pk_bf16_f32 v8, v8, v9")
    a("v_cvt_pk_bf16_f32 v9, v10, v11")
    a("v_lshlrev_b32 v2, 3, v0")
    a("buffer_store_dwordx2 v[8:9], v2, s[16:19], 0 offen")
    a.label(f"{name}_end")
    a("s_endpgm")
    kernel_end(name, 112)


def main():
    hdr = []
    for line in open(REF):
        if line.startswith("; @launch"):
            break
        if line.startswith("; Override") or line.startswith("; grid="):
            continue
        hdr.append(line.rstrip("\n"))
    launches = [
        ("k2_attn_kernel", 512, 256, 33280),
        ("k3_wo_kernel", 64, 512, 36864),
        ("k4_gu_kernel", 112, 256, 41024),
        ("k5_dn_kernel", 56, 256, 20480),
    ]
    for n, g, b, l in launches:
        hdr.append(f"; @launch kernel={n} grid=({g},1,1) block=({b},1,1) lds={l}")
    hdr.append('.amdgcn_target "amdgcn-amd-amdhsa--gfx950"')
    hdr.append(".text")
    attn_kernel("k2_attn_kernel")
    wo_kernel("k3_wo_kernel")
    gu_kernel("k4_gu_kernel")
    dn_kernel("k5_dn_kernel")
    tail = ['.section .rodata,"a"']
    for n, v, s in KERNELS:
        nv = (v + 7) // 8 * 8
        tail += [".p2align 6", f".amdhsa_kernel {n}",
                 f"  .amdhsa_next_free_vgpr {nv}",
                 f"  .amdhsa_next_free_sgpr {s}",
                 f"  .amdhsa_accum_offset {nv}",
                 "  .amdhsa_group_segment_fixed_size 0",
                 "  .amdhsa_kernarg_size 112",
                 "  .amdhsa_user_sgpr_count 2",
                 "  .amdhsa_user_sgpr_kernarg_segment_ptr 1",
                 "  .amdhsa_system_sgpr_workgroup_id_x 1",
                 ".end_amdhsa_kernel"]
    open(OUT, "w").write("\n".join(hdr + a.lines + tail) + "\n")


main()
```

```python
import sys

import os
REF = "adaLN_cond__gqa_block_cached__glu_gated_bilinear__decode.s.ref"
OUT = os.environ.get("GEN_OUT", REF[:-4])
ENV = lambda k, d: type(d)(os.environ.get(k, d))

KA_X, KA_K, KA_V, KA_WQ, KA_WO, KA_BX, KA_WG, KA_WU, KA_WD, KA_C, KA_WMOD, KA_OUT, KA_DBG, KA_WS = [8 * i for i in range(14)]

WS_MOD = 0
WS_Q = 32768
WS_X1 = 49152
WS_ACC = 65536
WS_ACC_WO = 65536
WS_ACC_DN = 69632
WS_ACC_GU = 73728
WS_ACC_END = 102400
WS_PM = 131072
WS_PL = 139264
WS_PO = 262144
WS_BYTES = 0x20000000

SCALE_C = 1.4426950408889634 / (128 ** 0.5)

import struct


def f32hex(x):
    return "0x%08x" % struct.unpack("<I", struct.pack("<f", x))[0]


class Asm:
    def __init__(self):
        self.lines = []

    def __call__(self, s):
        self.lines.append("    " + s)

    def label(self, s):
        self.lines.append(s + ":")

    def raw(self, s):
        self.lines.append(s)


a = Asm()
KERNELS = []


def kernel_begin(name):
    a.raw(f".globl {name}")
    a.raw(".p2align 8")
    a.raw(f".type {name},@function")
    a.label(name)
    if name[:2] in os.environ.get("EMPTY", "").split(","):
        a("s_endpgm")


def kernel_end(name, vgprs, sgprs=96):
    KERNELS.append((name, vgprs, sgprs))


def load_ptr(dst, off):
    a(f"s_load_dwordx2 s[{dst}:{dst+1}], s[0:1], {off}")


def fin_srd(dst, nbytes):
    a(f"s_mov_b32 s{dst+2}, {nbytes}")
    a(f"s_mov_b32 s{dst+3}, 0x00020000")


def rne(v, tmp=None):
    t = v if tmp is None else tmp
    a(f"v_cvt_pk_bf16_f32 v{t}, v{v}, v{v}")
    a(f"v_lshlrev_b32 v{v}, 16, v{t}")


def wave_sum_to_sgpr(v, s, op="add"):
    opn = {"add": "v_add_f32", "max": "v_max_f32"}[op]
    for ctl in ["quad_perm:[1,0,3,2]", "quad_perm:[2,3,0,1]", "row_half_mirror", "row_mirror"]:
        a("s_nop 1")
        a(f"{opn}_dpp v{v}, v{v}, v{v} {ctl} row_mask:0xf bank_mask:0xf")
    a("s_nop 1")
    a(f"{opn}_dpp v{v}, v{v}, v{v} row_bcast:15 row_mask:0xa bank_mask:0xf")
    a("s_nop 1")
    a(f"{opn}_dpp v{v}, v{v}, v{v} row_bcast:31 row_mask:0xc bank_mask:0xf")
    a("s_nop 1")
    a(f"v_readlane_b32 s{s}, v{v}, 63")


def ln_prologue(xv, srd_ws, mod_shift, mod_scale, lds_red, vt):
    a(f"v_lshrrev_b32 v{vt}, 7, v0")
    a(f"v_mul_u32_u24 v{vt}, 12288, v{vt}")
    a(f"v_and_b32 v{vt+1}, 127, v0")
    a(f"v_lshl_add_u32 v{vt}, v{vt+1}, 4, v{vt}")
    a(f"s_mov_b32 s42, {WS_MOD + mod_shift*2048}")
    a(f"s_mov_b32 s43, {WS_MOD + mod_scale*2048}")
    a(f"buffer_load_dwordx4 v[{vt+4}:{vt+7}], v{vt}, s[{srd_ws}:{srd_ws+3}], s42 offen")
    a(f"buffer_load_dwordx4 v[{vt+8}:{vt+11}], v{vt}, s[{srd_ws}:{srd_ws+3}], s43 offen")
    a(f"v_add_f32 v{vt}, v{xv}, v{xv+1}")
    a(f"v_add_f32 v{vt+1}, v{xv+2}, v{xv+3}")
    a(f"v_add_f32 v{vt}, v{vt}, v{vt+1}")
    wave_sum_to_sgpr(vt, 40)
    a(f"v_lshrrev_b32 v{vt+1}, 6, v0")
    a(f"v_lshlrev_b32 v{vt+1}, 2, v{vt+1}")
    a(f"v_mov_b32 v{vt}, s40")
    a(f"ds_write_b32 v{vt+1}, v{vt} offset:{lds_red}")
    a("s_waitcnt lgkmcnt(0)")
    a("s_barrier")
    a(f"v_lshrrev_b32 v{vt+1}, 7, v0")
    a(f"v_lshlrev_b32 v{vt+1}, 3, v{vt+1}")
    a(f"ds_read_b64 v[{vt+2}:{vt+3}], v{vt+1} offset:{lds_red}")
    a("s_waitcnt lgkmcnt(0)")
    a(f"v_add_f32 v{vt+2}, v{vt+2}, v{vt+3}")
    a(f"v_mul_f32 v{vt+2}, {f32hex(1.0/512)}, v{vt+2}")
    for i in range(4):
        a(f"v_sub_f32 v{vt+3}, v{xv+i}, v{vt+2}")
        if i == 0:
            a(f"v_mul_f32 v{vt}, v{vt+3}, v{vt+3}")
        else:
            a(f"v_fmac_f32 v{vt}, v{vt+3}, v{vt+3}")
    wave_sum_to_sgpr(vt, 41)
    a(f"v_lshrrev_b32 v{vt+1}, 6, v0")
    a(f"v_lshlrev_b32 v{vt+1}, 2, v{vt+1}")
    a(f"v_mov_b32 v{vt}, s41")
    a(f"ds_write_b32 v{vt+1}, v{vt} offset:{lds_red+16}")
    a("s_waitcnt lgkmcnt(0)")
    a("s_barrier")
    a(f"v_lshrrev_b32 v{vt+1}, 7, v0")
    a(f"v_lshlrev_b32 v{vt+1}, 3, v{vt+1}")
    a(f"ds_read_b64 v[{vt}:{vt+1}], v{vt+1} offset:{lds_red+16}")
    a("s_waitcnt lgkmcnt(0)")
    a(f"v_add_f32 v{vt}, v{vt}, v{vt+1}")
    a(f"v_mul_f32 v{vt}, {f32hex(1.0/512)}, v{vt}")
    rne(vt)
    rne(vt + 2)
    a(f"v_add_f32 v{vt}, {f32hex(1e-5)}, v{vt}")
    rne(vt)
    a(f"v_sqrt_f32 v{vt}, v{vt}")
    a("s_nop 0")
    rne(vt)
    a(f"v_rcp_f32 v{vt}, v{vt}")
    a("s_waitcnt vmcnt(0)")
    for i in range(4):
        a(f"v_sub_f32 v{xv+i}, v{xv+i}, v{vt+2}")
        rne(xv + i)
        a(f"v_mul_f32 v{xv+i}, v{xv+i}, v{vt}")
        rne(xv + i)
        a(f"v_add_f32 v{vt+8+i}, 1.0, v{vt+8+i}")
        rne(vt + 8 + i)
        a(f"v_mul_f32 v{xv+i}, v{xv+i}, v{vt+8+i}")
        rne(xv + i)
        a(f"v_add_f32 v{xv+i}, v{xv+i}, v{vt+4+i}")
        rne(xv + i)


def unpack_x4(src_pair, dst):
    a(f"v_and_b32 v{dst+1}, 0xffff0000, v{src_pair}")
    a(f"v_lshlrev_b32 v{dst}, 16, v{src_pair}")
    a(f"v_and_b32 v{dst+3}, 0xffff0000, v{src_pair+1}")
    a(f"v_lshlrev_b32 v{dst+2}, 16, v{src_pair+1}")


def gemv_nsplit(name, which):
    nwg = 96 if which == "mod" else 128
    row_stride = 6144 if which == "mod" else 8192
    w_bytes = 512 * row_stride
    kernel_begin(name)
    a(f"s_cmp_ge_u32 s2, {nwg}")
    a(f"s_cbranch_scc1 {name}_end")
    load_ptr(8, KA_C if which == "mod" else KA_X)
    load_ptr(12, KA_WMOD if which == "mod" else KA_WQ)
    load_ptr(16, KA_WS)
    a("s_waitcnt lgkmcnt(0)")
    fin_srd(8, 2048)
    fin_srd(12, w_bytes)
    fin_srd(16, WS_BYTES)
    if which == "mod":
        nz = (WS_ACC_END - WS_ACC) // 1024
        a(f"s_cmp_ge_u32 s2, {nz}")
        a(f"s_cbranch_scc1 {name}_nozero")
        a("s_lshl_b32 s21, s2, 10")
        a("v_lshlrev_b32 v3, 2, v0")
        a("v_add_u32 v3, s21, v3")
        a("v_mov_b32 v6, 0")
        a(f"s_mov_b32 s22, {WS_ACC}")
        a("buffer_store_dword v6, v3, s[16:19], s22 offen")
        a.label(f"{name}_nozero")
    a("v_lshlrev_b32 v2, 3, v0")
    a("buffer_load_dwordx2 v[4:5], v2, s[8:11], 0 offen")
    a("v_lshrrev_b32 v1, 2, v0")
    a(f"s_mov_b32 s20, {row_stride}")
    a("v_mul_lo_u32 v1, v1, s20")
    a("v_and_b32 v2, 3, v0")
    a("v_lshl_add_u32 v1, v2, 4, v1")
    a("s_lshl_b32 s21, s2, 6")
    a("v_add_u32 v1, s21, v1")
    for it in range(8):
        a(f"s_mov_b32 s20, {it*64*row_stride}")
        a(f"buffer_load_dwordx4 v[{32+4*it}:{35+4*it}], v1, s[12:15], s20 offen {WF}")
    a("s_waitcnt vmcnt(8)")
    unpack_x4(4, 8)
    if which == "mod":
        for i in range(4):
            a(f"v_mul_f32 v12, {f32hex(-1.4426950408889634)}, v{8+i}")
            a("v_exp_f32 v12, v12")
            a("s_nop 0")
            a("v_add_f32 v12, 1.0, v12")
            a("v_rcp_f32 v12, v12")
            a("s_nop 0")
            a(f"v_mul_f32 v{8+i}, v{8+i}, v12")
            rne(8 + i)
    else:
        ln_prologue(8, 16, 0, 1, 20480, 12)
    a("v_lshlrev_b32 v2, 4, v0")
    a("ds_write_b128 v2, v[8:11]")
    a("s_waitcnt lgkmcnt(0)")
    a("s_barrier")
    a("v_lshrrev_b32 v2, 2, v0")
    a("v_lshlrev_b32 v2, 2, v2")
    for b in range(2):
        for it in range(8):
            a(f"ds_read_b32 v{80+b*8+it}, v2 offset:{(b*512+64*it)*4}")
    for i in range(16):
        a(f"v_mov_b32 v{64+i}, 0")
    a("s_waitcnt vmcnt(0) lgkmcnt(0)")
    for it in range(8):
        for q in range(4):
            src = 32 + 4 * it + q
            a(f"v_lshlrev_b32 v12, 16, v{src}")
            a(f"v_and_b32 v13, 0xffff0000, v{src}")
            for b in range(2):
                a(f"v_fmac_f32 v{64+b*8+2*q}, v12, v{80+b*8+it}")
                a(f"v_fmac_f32 v{64+b*8+2*q+1}, v13, v{80+b*8+it}")
    a("v_lshlrev_b32 v2, 6, v0")
    for i in range(4):
        a(f"ds_write_b128 v2, v[{64+4*i}:{67+4*i}] offset:{4096+16*i}")
    a("s_waitcnt lgkmcnt(0)")
    a("s_barrier")
    a("v_and_b32 v2, 63, v0")
    a("v_lshrrev_b32 v3, 5, v2")
    a("v_lshlrev_b32 v3, 5, v3")
    a("v_and_b32 v4, 7, v2")
    a("v_lshl_add_u32 v3, v4, 2, v3")
    a("v_bfe_u32 v4, v2, 3, 2")
    a("v_lshl_add_u32 v3, v4, 6, v3")
    a("v_lshrrev_b32 v4, 6, v0")
    a("v_lshl_add_u32 v3, v4, 12, v3")
    for r in range(16):
        a(f"ds_read_b32 v{32+r}, v3 offset:{4096+r*256}")
    a("s_waitcnt lgkmcnt(0)")
    for r in range(1, 16):
        a(f"v_add_f32 v32, v32, v{32+r}")
    a("v_lshlrev_b32 v3, 2, v0")
    a("ds_write_b32 v3, v32 offset:0")
    a("s_waitcnt lgkmcnt(0)")
    a("s_barrier")
    a("v_cmp_gt_u32 vcc, 64, v0")
    a("s_and_saveexec_b64 s[24:25], vcc")
    a(f"s_cbranch_execz {name}_end")
    for r in range(4):
        a(f"ds_read_b32 v{32+r}, v3 offset:{r*256}")
    a("s_waitcnt lgkmcnt(0)")
    a("v_add_f32 v32, v32, v33")
    a("v_add_f32 v34, v34, v35")
    a("v_add_f32 v32, v32, v34")
    a("v_lshrrev_b32 v4, 5, v0")
    a("v_and_b32 v5, 31, v0")
    a("s_lshl_b32 s21, s2, 5")
    a("v_add_u32 v5, s21, v5")
    if which == "mod":
        rne(32)
        a("v_mul_u32_u24 v4, 3072, v4")
        a("v_add_lshl_u32 v5, v4, v5, 2")
        a(f"buffer_store_dword v32, v5, s[16:19], 0 offen offset:{WS_MOD}")
    else:
        a("v_cvt_pk_bf16_f32 v32, v32, v32")
        a("v_lshlrev_b32 v4, 12, v4")
        a("v_add_lshl_u32 v5, v4, v5, 1")
        a(f"s_mov_b32 s22, {WS_Q}")
        a("buffer_store_short v32, v5, s[16:19], s22 offen")
    a.label(f"{name}_end")
    a("s_endpgm")
    kernel_end(name, 96)


SPIN_MAX = 200000


def wave_reduce16(acc):
    steps = [("quad_perm:[1,0,3,2]", "0xf"), ("quad_perm:[2,3,0,1]", "0xf"), ("row_half_mirror", "0xf"),
             ("row_mirror", "0xf"), ("row_bcast:15", "0xa"), ("row_bcast:31", "0xc")]
    a("s_nop 1")
    for ctl, rm in steps:
        for i in range(16):
            a(f"v_add_f32_dpp v{acc+i}, v{acc+i}, v{acc+i} {ctl} row_mask:{rm} bank_mask:0xf")
        a("s_nop 1")


def publish(cnt_off, lbl):
    a("s_waitcnt vmcnt(0)")
    a("v_mov_b32 v77, 1")
    a("v_mov_b32 v76, 0")
    a("s_mov_b64 s[24:25], exec")
    a("s_mov_b64 exec, 1")
    a(f"buffer_atomic_add v77, v76, s[36:39], 0 offen offset:{cnt_off}")
    a("s_mov_b64 exec, s[24:25]")


def poll(cnt_off, target, lbl):
    a("v_mov_b32 v76, 0")
    a("s_mov_b32 s26, 0")
    a.label(lbl)
    a(f"buffer_load_dword v77, v76, s[36:39], 0 offen offset:{cnt_off} sc1")
    a("s_waitcnt vmcnt(0)")
    a("v_readfirstlane_b32 s27, v77")
    a(f"s_cmp_ge_u32 s27, {target}")
    a(f"s_cbranch_scc1 {lbl}_ok")
    a("s_sleep 16")
    a("s_add_u32 s26, s26, 1")
    a(f"s_cmp_lt_u32 s26, {SPIN_MAX}")
    a(f"s_cbranch_scc1 {lbl}")
    a.label(f"{lbl}_ok")


def s0_worker(name):
    load_ptr(28, KA_WMOD)
    load_ptr(32, KA_C)
    a("s_waitcnt lgkmcnt(0)")
    fin_srd(28, 512 * 6144)
    fin_srd(32, 2048)
    a("v_and_b32 v3, 63, v0")
    a("v_mul_u32_u24 v99, 49152, v3")
    a("s_lshl_b32 s20, s2, 4")
    for i in range(8):
        a(f"s_add_u32 s21, s20, {i*6144}")
        a(f"buffer_load_dwordx4 v[{100+4*i}:{103+4*i}], v99, s[28:31], s21 offen nt")
    a("v_lshlrev_b32 v98, 4, v3")
    a("buffer_load_dwordx4 v[92:95], v98, s[32:35], 0 offen")
    a("buffer_load_dwordx4 v[132:135], v98, s[32:35], 0 offen offset:1024")
    a("s_waitcnt vmcnt(0)")
    for b, src in ((0, 92), (1, 132)):
        for q in range(4):
            a(f"v_lshlrev_b32 v{140+b*8+2*q}, 16, v{src+q}")
            a(f"v_and_b32 v{140+b*8+2*q+1}, 0xffff0000, v{src+q}")
    for i in range(16):
        a(f"v_mul_f32 v96, {f32hex(-1.4426950408889634)}, v{140+i}")
        a("v_exp_f32 v96, v96")
        a("s_nop 0")
        a("v_add_f32 v96, 1.0, v96")
        a("v_rcp_f32 v96, v96")
        a("s_nop 0")
        a(f"v_mul_f32 v{140+i}, v{140+i}, v96")
        rne(140 + i)
    gemv8(100, 140, 160)
    for i in range(16):
        rne(160 + i)
    a("s_lshl_b32 s20, s2, 5")
    a(f"s_add_u32 s21, s20, {WS_MOD + 12288}")
    a(f"s_add_u32 s20, s20, {WS_MOD}")
    a("v_mov_b32 v76, 0")
    a("s_mov_b64 s[24:25], exec")
    a("s_mov_b32 exec_lo, 0")
    a("s_mov_b32 exec_hi, 0x80000000")
    a("buffer_store_dwordx4 v[160:163], v76, s[12:15], s20 offen sc1")
    a("buffer_store_dwordx4 v[164:167], v76, s[12:15], s20 offen offset:16 sc1")
    a("buffer_store_dwordx4 v[168:171], v76, s[12:15], s21 offen sc1")
    a("buffer_store_dwordx4 v[172:175], v76, s[12:15], s21 offen offset:16 sc1")
    a("s_mov_b64 exec, s[24:25]")
    a("s_cmp_ge_u32 s2, 128")
    a(f"s_cbranch_scc1 {name}_s0done")
    publish(0, f"{name}_pa")
    a.label(f"{name}_s0done")


def gemv8(wreg, hreg, acc):
    for i in range(16):
        a(f"v_mov_b32 v{acc+i}, 0")
    for i in range(8):
        for q in range(4):
            src = wreg + 4 * i + q
            a(f"v_lshlrev_b32 v96, 16, v{src}")
            a(f"v_and_b32 v97, 0xffff0000, v{src}")
            for b in range(2):
                a(f"v_fmac_f32 v{acc+b*8+2*q}, v96, v{hreg+b*8+i}")
                a(f"v_fmac_f32 v{acc+b*8+2*q+1}, v97, v{hreg+b*8+i}")
    wave_reduce16(acc)


def s1_worker(name):
    load_ptr(28, KA_WQ)
    load_ptr(32, KA_X)
    a("s_waitcnt lgkmcnt(0)")
    fin_srd(28, 512 * 8192)
    fin_srd(32, 2048)
    a("v_and_b32 v3, 63, v0")
    a("v_lshlrev_b32 v99, 16, v3")
    a("s_lshl_b32 s20, s2, 4")
    for i in range(8):
        a(f"s_add_u32 s21, s20, {i*8192}")
        a(f"buffer_load_dwordx4 v[{100+4*i}:{103+4*i}], v99, s[28:31], s21 offen nt")
    a("v_lshlrev_b32 v98, 4, v3")
    a("buffer_load_dwordx4 v[92:95], v98, s[32:35], 0 offen")
    a("buffer_load_dwordx4 v[132:135], v98, s[32:35], 0 offen offset:1024")
    poll(0, 128, f"{name}_polla")
    a("v_lshlrev_b32 v98, 5, v3")
    for b in range(2):
        a(f"s_mov_b32 s20, {WS_MOD + b*12288}")
        a(f"buffer_load_dwordx4 v[{176+b*8}:{179+b*8}], v98, s[12:15], s20 offen sc1")
        a(f"buffer_load_dwordx4 v[{180+b*8}:{183+b*8}], v98, s[12:15], s20 offen offset:16 sc1")
        a(f"buffer_load_dwordx4 v[{192+b*8}:{195+b*8}], v98, s[12:15], s20 offen offset:2048 sc1")
        a(f"buffer_load_dwordx4 v[{196+b*8}:{199+b*8}], v98, s[12:15], s20 offen offset:2064 sc1")
    for b, src in ((0, 92), (1, 132)):
        for q in range(4):
            a(f"v_lshlrev_b32 v{140+b*8+2*q}, 16, v{src+q}")
            a(f"v_and_b32 v{140+b*8+2*q+1}, 0xffff0000, v{src+q}")
    for b in range(2):
        x0 = 140 + b * 8
        a(f"v_add_f32 v96, v{x0}, v{x0+1}")
        for i in range(2, 8):
            a(f"v_add_f32 v96, v96, v{x0+i}")
        wave_sum_to_sgpr(96, 40)
        a(f"v_mov_b32 v97, {f32hex(1.0/512)}")
        a("s_nop 1")
        a("v_mul_f32 v97, s40, v97")
        for i in range(8):
            a(f"v_sub_f32 v95, v{x0+i}, v97")
            if i == 0:
                a("v_mul_f32 v96, v95, v95")
            else:
                a("v_fmac_f32 v96, v95, v95")
        wave_sum_to_sgpr(96, 41)
        a(f"v_mov_b32 v96, {f32hex(1.0/512)}")
        a("s_nop 1")
        a("v_mul_f32 v96, s41, v96")
        rne(96)
        rne(97)
        a(f"v_add_f32 v96, {f32hex(1e-5)}, v96")
        rne(96)
        a("v_sqrt_f32 v96, v96")
        a("s_nop 0")
        rne(96)
        a("v_rcp_f32 v96, v96")
        a("s_waitcnt vmcnt(0)")
        for i in range(8):
            a(f"v_sub_f32 v{x0+i}, v{x0+i}, v97")
            rne(x0 + i)
            a(f"v_mul_f32 v{x0+i}, v{x0+i}, v96")
            rne(x0 + i)
            a(f"v_add_f32 v{192+b*8+i}, 1.0, v{192+b*8+i}")
            rne(192 + b * 8 + i)
            a(f"v_mul_f32 v{x0+i}, v{x0+i}, v{192+b*8+i}")
            rne(x0 + i)
            a(f"v_add_f32 v{x0+i}, v{x0+i}, v{176+b*8+i}")
            rne(x0 + i)
    gemv8(100, 140, 160)
    for b in range(2):
        for q in range(4):
            a(f"v_cvt_pk_bf16_f32 v{176+b*4+q}, v{160+b*8+2*q}, v{160+b*8+2*q+1}")
    a("s_lshl_b32 s20, s2, 4")
    a(f"s_add_u32 s21, s20, {WS_Q + 8192}")
    a(f"s_add_u32 s20, s20, {WS_Q}")
    a("v_mov_b32 v76, 0")
    a("s_mov_b64 s[24:25], exec")
    a("s_mov_b32 exec_lo, 0")
    a("s_mov_b32 exec_hi, 0x80000000")
    a("buffer_store_dwordx4 v[176:179], v76, s[12:15], s20 offen sc1")
    a("buffer_store_dwordx4 v[180:183], v76, s[12:15], s21 offen sc1")
    a("s_mov_b64 exec, s[24:25]")
    publish(4, f"{name}_pb")


D = ENV("K2_D", 4)
K2_FLAGS = ENV("K2_FLAGS", "nt")
K2_NOCOMP = ENV("K2_NOCOMP", 0)
WF = ENV("W_FLAGS", "")
NT = 16
VQ = 4
VO = 20
VS = 52
VP = 56
VM, VL, VT, VA = 60, 61, 62, 63
VF = 64
VMC = 72
VK = 80
VV = VK + 16 * D


def attn_kernel(name):
    kernel_begin(name)
    a("s_cmp_ge_u32 s2, 512")
    a(f"s_cbranch_scc1 {name}_end")
    load_ptr(4, KA_K)
    load_ptr(8, KA_V)
    load_ptr(12, KA_WS)
    load_ptr(36, KA_DBG)
    a("v_lshrrev_b32 v3, 6, v0")
    a("s_nop 0")
    a("v_readfirstlane_b32 s16, v3")
    a("s_waitcnt lgkmcnt(0)")
    fin_srd(4, 134217728)
    fin_srd(8, 134217728)
    fin_srd(12, WS_BYTES)
    fin_srd(36, 256)
    a("s_lshl_b32 s17, s2, 18")
    a("s_lshl_b32 s18, s16, 16")
    a("s_add_u32 s17, s17, s18")
    a("v_and_b32 v3, 63, v0")
    a("v_and_b32 v1, 15, v3")
    a("v_lshlrev_b32 v1, 8, v1")
    a("v_lshrrev_b32 v2, 4, v3")
    a("v_lshl_add_u32 v1, v2, 4, v1")
    a("v_lshlrev_b32 v2, 10, v2")
    a("v_and_b32 v73, 15, v3")
    a("v_lshl_add_u32 v2, v73, 4, v2")
    def issue_k(t):
        buf = VK + 16 * (t % D)
        a(f"s_add_u32 s18, s17, {t*4096}")
        for j in range(4):
            a(f"buffer_load_dwordx4 v[{buf+4*j}:{buf+4*j+3}], v1, s[4:7], s18 offen offset:{64*j} {K2_FLAGS}")

    def issue_v(t):
        buf = VV + 16 * (t % D)
        a(f"s_add_u32 s19, s17, {t*4096}")
        for j in range(4):
            a(f"buffer_load_dwordx4 v[{buf+4*j}:{buf+4*j+3}], v2, s[8:11], s19 offen offset:{256*j} {K2_FLAGS}")

    for t in range(D):
        issue_k(t)
        issue_v(t)
    a("s_lshr_b32 s20, s2, 5")
    a("s_lshl_b32 s20, s20, 10")
    a(f"s_add_u32 s20, s20, {WS_Q}")
    a("v_and_b32 v73, 15, v3")
    a("v_lshlrev_b32 v74, 8, v73")
    a("v_lshrrev_b32 v75, 4, v3")
    a("v_lshl_add_u32 v74, v75, 4, v74")
    a("v_mov_b32 v75, 0x40000000")
    a("v_cmp_gt_u32 vcc, 4, v73")
    a("s_nop 1")
    a("v_cndmask_b32 v74, v75, v74, vcc")
    for j in range(4):
        a(f"buffer_load_dwordx4 v[{VQ+4*j}:{VQ+4*j+3}], v74, s[12:15], s20 offen offset:{64*j} sc1")
    a("s_waitcnt vmcnt(0)")
    for i in range(32):
        a(f"v_mov_b32 v{VO+i}, 0")
    a(f"v_mov_b32 v{VM}, 0xff800000")
    a(f"v_mov_b32 v{VL}, 0")
    a(f"s_mov_b32 s21, {f32hex(SCALE_C)}")
    for t in range(NT):
        kb = VK + 16 * (t % D)
        vb = VV + 16 * (t % D)
        after_k = 4 + 8 * (min(NT, t + D) - t - 1)
        a(f"s_waitcnt vmcnt({after_k})")
        a(f"v_mfma_f32_16x16x32_bf16 v[{VS}:{VS+3}], v[{kb}:{kb+3}], v[{VQ}:{VQ+3}], 0")
        for j in range(1, 4):
            a(f"v_mfma_f32_16x16x32_bf16 v[{VS}:{VS+3}], v[{kb+4*j}:{kb+4*j+3}], v[{VQ+4*j}:{VQ+4*j+3}], v[{VS}:{VS+3}]")
        if t + D < NT:
            issue_k(t + D)
            a("s_nop 3")
        else:
            a("s_nop 7")
        a("s_nop 1")
        a(f"v_max3_f32 v{VT}, v{VS}, v{VS+1}, v{VS+2}")
        a(f"v_max3_f32 v{VT}, v{VT}, v{VS+3}, v{VM}")
        a(f"v_cmp_gt_f32 vcc, v{VT}, v{VM}")
        a("s_nop 1")
        a(f"s_cbranch_vccz {name}_nr{t}")
        a(f"v_sub_f32 v{VA}, v{VM}, v{VT}")
        a(f"v_mul_f32 v{VA}, s21, v{VA}")
        a(f"v_exp_f32 v{VA}, v{VA}")
        a(f"v_mov_b32 v{VM}, v{VT}")
        a(f"v_mul_f32 v{VL}, v{VL}, v{VA}")
        a("s_nop 0")
        for h in range(4):
            for e in range(8):
                a(f"v_mul_f32_dpp v{VO+h*8+e}, v{VA}, v{VO+h*8+e} row_newbcast:{h} row_mask:0xf bank_mask:0xf")
        a.label(f"{name}_nr{t}")
        a(f"v_mul_f32 v{VMC}, s21, v{VM}")
        for i in range(4):
            a(f"v_fma_f32 v{VP+i}, v{VS+i}, s21, -v{VMC}")
        for i in range(4):
            a(f"v_exp_f32 v{VP+i}, v{VP+i}")
        after_v = 8 * (min(NT, t + D) - t - 1) + (4 if t + D < NT else 0)
        a(f"s_waitcnt vmcnt({after_v})")
        a(f"v_add_f32 v{VT}, v{VP}, v{VP+1}")
        a(f"v_add_f32 v{VA}, v{VP+2}, v{VP+3}")
        a(f"v_add_f32 v{VL}, v{VL}, v{VT}")
        a(f"v_add_f32 v{VL}, v{VL}, v{VA}")
        for j in range(4):
            for q in range(4):
                a(f"v_lshlrev_b32 v{VF+2*q}, 16, v{vb+4*j+q}")
                a(f"v_and_b32 v{VF+2*q+1}, 0xffff0000, v{vb+4*j+q}")
            for h in range(4):
                for e in range(8):
                    a(f"v_fmac_f32_dpp v{VO+h*8+e}, v{VP+j}, v{VF+e} row_newbcast:{h} row_mask:0xf bank_mask:0xf")
        if t + D < NT:
            issue_v(t + D)
    a("v_lshrrev_b32 v1, 4, v0")
    a("v_lshlrev_b32 v2, 11, v1")
    a("v_and_b32 v3, 15, v0")
    a("v_lshl_add_u32 v2, v3, 5, v2")
    for h in range(4):
        a(f"ds_write_b128 v2, v[{VO+h*8}:{VO+h*8+3}] offset:{h*512}")
        a(f"ds_write_b128 v2, v[{VO+h*8+4}:{VO+h*8+7}] offset:{h*512+16}")
    a("v_lshlrev_b32 v2, 5, v1")
    a("v_lshl_add_u32 v2, v3, 3, v2")
    a("v_cmp_gt_u32 vcc, 4, v3")
    a("s_and_saveexec_b64 s[24:25], vcc")
    a(f"ds_write_b64 v2, v[{VM}:{VL}] offset:32768")
    a("s_mov_b64 exec, s[24:25]")
    a("s_waitcnt lgkmcnt(0)")
    a("s_barrier")
    a("v_lshrrev_b32 v1, 6, v0")
    a("v_lshlrev_b32 v2, 3, v1")
    for s in range(16):
        a(f"ds_read_b64 v[{80+2*s}:{81+2*s}], v2 offset:{32768+s*32}")
    a("v_and_b32 v3, 63, v0")
    a("v_lshlrev_b32 v3, 3, v3")
    a("v_lshl_add_u32 v3, v1, 9, v3")
    for s in range(16):
        a(f"ds_read_b64 v[{120+2*s}:{121+2*s}], v3 offset:{s*2048}")
    a("s_waitcnt lgkmcnt(0)")
    a("v_max_f32 v4, v80, v82")
    for s in range(2, 16):
        a(f"v_max_f32 v4, v4, v{80+2*s}")
    a("v_mov_b32 v5, 0")
    a("v_mov_b32 v6, 0")
    a("v_mov_b32 v7, 0")
    for s in range(16):
        a(f"v_sub_f32 v8, v{80+2*s}, v4")
        a("v_mul_f32 v8, s21, v8")
        a("v_exp_f32 v8, v8")
        a("s_nop 0")
        a(f"v_fmac_f32 v5, v8, v{81+2*s}")
        a(f"v_fmac_f32 v6, v8, v{120+2*s}")
        a(f"v_fmac_f32 v7, v8, v{121+2*s}")
    a("s_lshl_b32 s20, s2, 11")
    a(f"s_add_u32 s20, s20, {WS_PO}")
    a("buffer_store_dwordx2 v[6:7], v3, s[12:15], s20 offen")
    a("v_and_b32 v9, 63, v0")
    a("v_cmp_eq_u32 vcc, 0, v9")
    a("s_and_saveexec_b64 s[24:25], vcc")
    a("s_lshr_b32 s20, s2, 5")
    a("s_lshl_b32 s20, s20, 9")
    a("s_and_b32 s22, s2, 31")
    a("s_lshl_b32 s22, s22, 2")
    a("s_add_u32 s20, s20, s22")
    a(f"s_add_u32 s22, s20, {WS_PL}")
    a(f"s_add_u32 s20, s20, {WS_PM}")
    a("v_lshlrev_b32 v1, 7, v1")
    a("buffer_store_dword v4, v1, s[12:15], s20 offen")
    a("buffer_store_dword v5, v1, s[12:15], s22 offen")
    a.label(f"{name}_end")
    a("s_endpgm")
    kernel_end(name, VV + 16 * D)


def wo_kernel(name):
    kernel_begin(name)
    a("s_cmp_ge_u32 s2, 64")
    a(f"s_cbranch_scc1 {name}_end")
    load_ptr(8, KA_WO)
    load_ptr(12, KA_WS)
    a("s_waitcnt lgkmcnt(0)")
    fin_srd(8, 4194304)
    fin_srd(12, WS_BYTES)
    a("v_lshrrev_b32 v1, 6, v0")
    a("v_lshlrev_b32 v1, 13, v1")
    a("v_and_b32 v2, 63, v0")
    a("v_lshl_add_u32 v1, v2, 4, v1")
    a("s_lshl_b32 s20, s2, 16")
    a("s_add_u32 s21, s20, 4096")
    for it in range(8):
        a(f"buffer_load_dwordx4 v[{32+4*it}:{35+4*it}], v1, s[8:11], s{20 if it < 4 else 21} offen offset:{(it%4)*1024} {WF}")
    a("s_lshr_b32 s22, s2, 1")
    a("s_lshr_b32 s23, s22, 2")
    a("s_and_b32 s24, s22, 3")
    a("s_lshl_b32 s25, s23, 9")
    a("s_lshl_b32 s26, s24, 7")
    a("s_add_u32 s25, s25, s26")
    a("v_lshrrev_b32 v3, 8, v0")
    a("v_lshlrev_b32 v4, 12, v3")
    a(f"s_add_u32 s26, s25, {WS_PM}")
    a(f"s_add_u32 s27, s25, {WS_PL}")
    for i in range(8):
        a(f"buffer_load_dwordx4 v[{64+4*i}:{67+4*i}], v4, s[12:15], s26 offen offset:{16*i}")
    for i in range(8):
        a(f"buffer_load_dwordx4 v[{96+4*i}:{99+4*i}], v4, s[12:15], s27 offen offset:{16*i}")
    a("s_lshl_b32 s25, s23, 16")
    a("s_lshl_b32 s26, s24, 9")
    a("s_add_u32 s25, s25, s26")
    a("s_and_b32 s26, s2, 1")
    a("s_lshl_b32 s26, s26, 8")
    a("s_add_u32 s25, s25, s26")
    a(f"s_add_u32 s25, s25, {WS_PO}")
    a("v_lshlrev_b32 v5, 19, v3")
    a("v_bfe_u32 v6, v0, 6, 2")
    a("v_lshl_add_u32 v5, v6, 14, v5")
    a("v_lshl_add_u32 v5, v2, 2, v5")
    for i in range(8):
        a(f"s_add_u32 s26, s25, {i*2048}")
        a(f"buffer_load_dword v{128+i}, v5, s[12:15], s26 offen")
    a(f"s_mov_b32 s28, {f32hex(SCALE_C)}")
    a("s_waitcnt vmcnt(8)")
    a("v_max_f32 v7, v64, v65")
    for s in range(2, 32):
        a(f"v_max_f32 v7, v7, v{64+s}")
    a("v_mov_b32 v8, 0")
    for s in range(32):
        a(f"v_sub_f32 v{64+s}, v{64+s}, v7")
        a(f"v_mul_f32 v{64+s}, s28, v{64+s}")
        a(f"v_exp_f32 v{64+s}, v{64+s}")
        a("s_nop 0")
        a(f"v_fmac_f32 v8, v{64+s}, v{96+s}")
    for i in range(8):
        a(f"v_mov_b32 v{136+i}, v{64+i}")
    for sq in range(1, 4):
        a(f"v_cmp_eq_u32 vcc, {sq}, v6")
        a("s_nop 1")
        for i in range(8):
            a(f"v_cndmask_b32 v{136+i}, v{136+i}, v{64+sq*8+i}, vcc")
    a("s_waitcnt vmcnt(0)")
    a("v_mul_f32 v9, v136, v128")
    for i in range(1, 8):
        a(f"v_fmac_f32 v9, v{136+i}, v{128+i}")
    a("v_lshlrev_b32 v10, 2, v0")
    a("ds_write_b32 v10, v9")
    a("s_waitcnt lgkmcnt(0)")
    a("s_barrier")
    a("v_lshlrev_b32 v10, 10, v3")
    a("v_lshl_add_u32 v10, v2, 2, v10")
    a("ds_read_b32 v11, v10 offset:0")
    a("ds_read_b32 v12, v10 offset:256")
    a("ds_read_b32 v13, v10 offset:512")
    a("ds_read_b32 v14, v10 offset:768")
    a("v_rcp_f32 v8, v8")
    a("s_waitcnt lgkmcnt(0)")
    a("v_add_f32 v11, v11, v12")
    a("v_add_f32 v13, v13, v14")
    a("v_add_f32 v11, v11, v13")
    a("v_mul_f32 v11, v11, v8")
    rne(11)
    a("v_lshlrev_b32 v10, 8, v3")
    a("v_lshl_add_u32 v10, v2, 2, v10")
    a("ds_write_b32 v10, v11 offset:2048")
    a("s_waitcnt lgkmcnt(0)")
    a("s_barrier")
    a("v_lshrrev_b32 v10, 6, v0")
    a("v_lshlrev_b32 v10, 5, v10")
    for b in range(2):
        for it in range(8):
            a(f"ds_read_b32 v{144+b*8+it}, v10 offset:{2048+b*256+it*4}")
    for i in range(16):
        a(f"v_mov_b32 v{160+i}, 0")
    a("s_waitcnt lgkmcnt(0)")
    for it in range(8):
        for q in range(4):
            src = 32 + 4 * it + q
            a(f"v_lshlrev_b32 v12, 16, v{src}")
            a(f"v_and_b32 v13, 0xffff0000, v{src}")
            for b in range(2):
                a(f"v_fmac_f32 v{160+b*8+2*q}, v12, v{144+b*8+it}")
                a(f"v_fmac_f32 v{160+b*8+2*q+1}, v13, v{144+b*8+it}")
    a("v_lshrrev_b32 v10, 6, v0")
    a("v_lshlrev_b32 v10, 12, v10")
    a("v_lshl_add_u32 v10, v2, 5, v10")
    for b in range(2):
        a(f"ds_write_b128 v10, v[{160+b*8}:{163+b*8}] offset:{4096+b*2048}")
        a(f"ds_write_b128 v10, v[{164+b*8}:{167+b*8}] offset:{4096+b*2048+16}")
    a("s_waitcnt lgkmcnt(0)")
    a("s_barrier")
    a("v_lshlrev_b32 v10, 2, v0")
    for b in range(2):
        for w in range(8):
            a(f"ds_read_b32 v{32+b*8+w}, v10 offset:{4096+w*4096+b*2048}")
    a("s_waitcnt lgkmcnt(0)")
    for b in range(2):
        for w in range(1, 8):
            a(f"v_add_f32 v{32+b*8}, v{32+b*8}, v{32+b*8+w}")
    a(f"s_mov_b32 s20, {WS_ACC_WO}")
    a(f"s_mov_b32 s21, {WS_ACC_WO+2048}")
    a("buffer_atomic_add_f32 v32, v10, s[12:15], s20 offen")
    a("buffer_atomic_add_f32 v40, v10, s[12:15], s21 offen")
    a.label(f"{name}_end")
    a("s_endpgm")
    kernel_end(name, 176)


def gu_kernel(name):
    kernel_begin(name)
    a("s_cmp_ge_u32 s2, 112")
    a(f"s_cbranch_scc1 {name}_end")
    load_ptr(4, KA_X)
    load_ptr(8, KA_WG)
    load_ptr(16, KA_WU)
    load_ptr(12, KA_WS)
    a("s_waitcnt lgkmcnt(0)")
    fin_srd(4, 2048)
    fin_srd(8, 512 * 3584)
    fin_srd(16, 512 * 3584)
    fin_srd(12, WS_BYTES)
    a("s_mul_i32 s20, s2, 9363")
    a("s_lshr_b32 s20, s20, 16")
    a("s_mul_i32 s21, s20, 7")
    a("s_sub_u32 s21, s2, s21")
    a("s_lshl_b32 s22, s20, 5")
    a("v_lshrrev_b32 v1, 5, v0")
    a("v_add_u32 v1, s22, v1")
    a("s_movk_i32 s23, 3584")
    a("v_mul_lo_u32 v1, v1, s23")
    a("v_and_b32 v2, 31, v0")
    a("v_lshl_add_u32 v1, v2, 4, v1")
    a("s_lshl_b32 s23, s21, 9")
    a("v_add_u32 v1, s23, v1")
    for it in range(4):
        a(f"s_mov_b32 s24, {it*8*3584}")
        a(f"buffer_load_dwordx4 v[{32+4*it}:{35+4*it}], v1, s[8:11], s24 offen {WF}")
        a(f"buffer_load_dwordx4 v[{48+4*it}:{51+4*it}], v1, s[16:19], s24 offen {WF}")
    a("v_lshlrev_b32 v2, 3, v0")
    a("buffer_load_dwordx2 v[4:5], v2, s[4:7], 0 offen")
    a("v_lshlrev_b32 v2, 4, v0")
    a(f"s_mov_b32 s24, {WS_ACC_WO}")
    a("buffer_load_dwordx4 v[24:27], v2, s[12:15], s24 offen")
    a("v_lshrrev_b32 v3, 7, v0")
    a("v_mul_u32_u24 v3, 12288, v3")
    a("v_and_b32 v6, 127, v0")
    a("v_lshl_add_u32 v3, v6, 4, v3")
    a(f"s_mov_b32 s25, {WS_MOD + 2*2048}")
    a(f"buffer_load_dwordx4 v[28:31], v3, s[12:15], s25 offen")
    a("s_waitcnt vmcnt(0)")
    unpack_x4(4, 8)
    for i in range(4):
        rne(24 + i)
        a(f"v_mul_f32 v{24+i}, v{24+i}, v{28+i}")
        rne(24 + i)
        a(f"v_add_f32 v{8+i}, v{8+i}, v{24+i}")
        rne(8 + i)
    a("s_cmp_lg_u32 s2, 0")
    a(f"s_cbranch_scc1 {name}_nox1")
    a(f"s_mov_b32 s24, {WS_X1}")
    a("buffer_store_dwordx4 v[8:11], v2, s[12:15], s24 offen")
    a.label(f"{name}_nox1")
    ln_prologue(8, 12, 3, 4, 40960, 12)
    a("v_lshlrev_b32 v2, 4, v0")
    a("ds_write_b128 v2, v[8:11]")
    a("s_waitcnt lgkmcnt(0)")
    a("s_barrier")
    a("v_lshrrev_b32 v2, 5, v0")
    a("v_add_lshl_u32 v2, s22, v2, 2")
    for b in range(2):
        for it in range(4):
            a(f"ds_read_b32 v{80+b*4+it}, v2 offset:{(b*512+8*it)*4}")
    for i in range(32):
        a(f"v_mov_b32 v{96+i}, 0")
    a("s_waitcnt lgkmcnt(0)")
    for m in range(2):
        for it in range(4):
            for q in range(4):
                src = 32 + 16 * m + 4 * it + q
                a(f"v_lshlrev_b32 v12, 16, v{src}")
                a(f"v_and_b32 v13, 0xffff0000, v{src}")
                for b in range(2):
                    a(f"v_fmac_f32 v{96+m*16+b*8+2*q}, v12, v{80+b*4+it}")
                    a(f"v_fmac_f32 v{96+m*16+b*8+2*q+1}, v13, v{80+b*4+it}")
    a("v_lshrrev_b32 v2, 5, v0")
    a("v_lshlrev_b32 v2, 12, v2")
    a("v_and_b32 v3, 31, v0")
    a("v_lshl_add_u32 v2, v3, 5, v2")
    for mb in range(4):
        a(f"ds_write_b128 v2, v[{96+mb*8}:{99+mb*8}] offset:{4096+mb*1024}")
        a(f"ds_write_b128 v2, v[{100+mb*8}:{103+mb*8}] offset:{4096+mb*1024+16}")
    a("s_waitcnt lgkmcnt(0)")
    a("s_barrier")
    a("v_lshlrev_b32 v2, 2, v0")
    for mb in range(4):
        for r in range(8):
            a(f"ds_read_b32 v{32+mb*8+r}, v2 offset:{4096+r*4096+mb*1024}")
    a("s_waitcnt lgkmcnt(0)")
    for mb in range(4):
        for r in range(1, 8):
            a(f"v_add_f32 v{32+mb*8}, v{32+mb*8}, v{32+mb*8+r}")
    a("s_lshl_b32 s23, s21, 10")
    for mb in range(4):
        a(f"s_add_u32 s24, s23, {WS_ACC_GU + mb*1792*4}")
        a(f"buffer_atomic_add_f32 v{32+mb*8}, v2, s[12:15], s24 offen")
    a.label(f"{name}_end")
    a("s_endpgm")
    kernel_end(name, 128)


def dn_kernel(name):
    kernel_begin(name)
    a("s_cmp_ge_u32 s2, 56")
    a(f"s_cbranch_scc1 {name}_end")
    load_ptr(8, KA_WD)
    load_ptr(12, KA_WS)
    load_ptr(16, KA_OUT)
    load_ptr(4, KA_DBG)
    a("s_waitcnt lgkmcnt(0)")
    fin_srd(8, 1792 * 1024)
    fin_srd(12, WS_BYTES)
    fin_srd(16, 2048)
    fin_srd(4, 256)
    a("v_lshrrev_b32 v1, 6, v0")
    a("v_lshlrev_b32 v1, 13, v1")
    a("v_and_b32 v2, 63, v0")
    a("v_lshl_add_u32 v1, v2, 4, v1")
    a("s_lshl_b32 s20, s2, 15")
    a("s_add_u32 s21, s20, 4096")
    for it in range(8):
        a(f"buffer_load_dwordx4 v[{32+4*it}:{35+4*it}], v1, s[8:11], s{20 if it < 4 else 21} offen offset:{(it%4)*1024} {WF}")
    a("v_lshrrev_b32 v3, 5, v0")
    a("v_mul_u32_u24 v3, 7168, v3")
    a("v_and_b32 v4, 31, v0")
    a("v_lshl_add_u32 v3, v4, 2, v3")
    a("s_lshl_b32 s22, s2, 7")
    a(f"s_add_u32 s23, s22, {WS_ACC_GU + 2*1792*4}")
    a(f"s_add_u32 s22, s22, {WS_ACC_GU}")
    a("v_cmp_gt_u32 vcc, 64, v0")
    a("s_and_saveexec_b64 s[24:25], vcc")
    a("buffer_load_dword v5, v3, s[12:15], s22 offen")
    a("buffer_load_dword v6, v3, s[12:15], s23 offen")
    a("s_waitcnt vmcnt(0)")
    rne(5)
    rne(6)
    a("v_mul_f32 v5, v5, v6")
    rne(5)
    a("v_lshlrev_b32 v4, 2, v0")
    a("ds_write_b32 v4, v5")
    a("s_mov_b64 exec, s[24:25]")
    a("s_waitcnt lgkmcnt(0)")
    a("s_barrier")
    a("v_lshrrev_b32 v10, 6, v0")
    a("v_lshlrev_b32 v10, 5, v10")
    for b in range(2):
        for it in range(8):
            a(f"ds_read_b32 v{80+b*8+it}, v10 offset:{b*128+it*4}")
    for i in range(16):
        a(f"v_mov_b32 v{96+i}, 0")
    a("s_waitcnt vmcnt(0) lgkmcnt(0)")
    for it in range(8):
        for q in range(4):
            src = 32 + 4 * it + q
            a(f"v_lshlrev_b32 v12, 16, v{src}")
            a(f"v_and_b32 v13, 0xffff0000, v{src}")
            for b in range(2):
                a(f"v_fmac_f32 v{96+b*8+2*q}, v12, v{80+b*8+it}")
                a(f"v_fmac_f32 v{96+b*8+2*q+1}, v13, v{80+b*8+it}")
    a("v_lshrrev_b32 v10, 6, v0")
    a("v_lshlrev_b32 v10, 12, v10")
    a("v_lshl_add_u32 v10, v2, 5, v10")
    for b in range(2):
        a(f"ds_write_b128 v10, v[{96+b*8}:{99+b*8}] offset:{4096+b*2048}")
        a(f"ds_write_b128 v10, v[{100+b*8}:{103+b*8}] offset:{4096+b*2048+16}")
    a("s_waitcnt lgkmcnt(0)")
    a("s_barrier")
    a("v_lshlrev_b32 v10, 2, v0")
    for k in range(4):
        for w in range(4):
            a(f"ds_read_b32 v{32+k*4+w}, v10 offset:{4096+w*4096+k*1024}")
    a("s_waitcnt lgkmcnt(0)")
    for k in range(4):
        for w in range(1, 4):
            a(f"v_add_f32 v{32+k*4}, v{32+k*4}, v{32+k*4+w}")
    for k in range(4):
        a(f"s_mov_b32 s20, {WS_ACC_DN + k*1024}")
        a(f"buffer_atomic_add_f32 v{32+k*4}, v10, s[12:15], s20 offen")
    a("s_waitcnt vmcnt(0)")
    a("s_barrier")
    a("v_mov_b32 v11, 1")
    a("v_mov_b32 v12, 0")
    a("v_cmp_eq_u32 vcc, 0, v0")
    a("s_and_saveexec_b64 s[24:25], vcc")
    a("buffer_atomic_add v11, v12, s[4:7], 0 offen sc0")
    a("s_waitcnt vmcnt(0)")
    a("v_lshlrev_b32 v13, 0, v11")
    a("ds_write_b32 v12, v13")
    a("s_mov_b64 exec, s[24:25]")
    a("s_waitcnt lgkmcnt(0)")
    a("s_barrier")
    a("ds_read_b32 v13, v12")
    a("s_waitcnt lgkmcnt(0)")
    a("s_nop 0")
    a("v_readfirstlane_b32 s26, v13")
    a("s_cmp_lg_u32 s26, 55")
    a(f"s_cbranch_scc1 {name}_end")
    a("v_lshlrev_b32 v2, 4, v0")
    a(f"s_mov_b32 s20, {WS_ACC_DN}")
    a("buffer_load_dwordx4 v[24:27], v2, s[12:15], s20 offen sc1")
    a(f"s_mov_b32 s20, {WS_X1}")
    a("buffer_load_dwordx4 v[8:11], v2, s[12:15], s20 offen")
    a("v_lshrrev_b32 v3, 7, v0")
    a("v_mul_u32_u24 v3, 12288, v3")
    a("v_and_b32 v6, 127, v0")
    a("v_lshl_add_u32 v3, v6, 4, v3")
    a(f"s_mov_b32 s21, {WS_MOD + 5*2048}")
    a(f"buffer_load_dwordx4 v[28:31], v3, s[12:15], s21 offen")
    a("s_waitcnt vmcnt(0)")
    for i in range(4):
        rne(24 + i)
        a(f"v_mul_f32 v{24+i}, v{24+i}, v{28+i}")
        rne(24 + i)
        a(f"v_add_f32 v{8+i}, v{8+i}, v{24+i}")
    a("v_cvt_pk_bf16_f32 v8, v8, v9")
    a("v_cvt_pk_bf16_f32 v9, v10, v11")
    a("v_lshlrev_b32 v2, 3, v0")
    a("buffer_store_dwordx2 v[8:9], v2, s[16:19], 0 offen")
    a.label(f"{name}_end")
    a("s_endpgm")
    kernel_end(name, 112)


def main():
    hdr = []
    for line in open(REF):
        if line.startswith("; @launch"):
            break
        if line.startswith("; Override") or line.startswith("; grid="):
            continue
        hdr.append(line.rstrip("\n"))
    launches = [
        ("k0_mod_kernel", 96, 256, 21504),
        ("k1_q_kernel", 128, 256, 21504),
        ("k2_attn_kernel", 512, 256, 33280),
        ("k3_wo_kernel", 64, 512, 36864),
        ("k4_gu_kernel", 112, 256, 41024),
        ("k5_dn_kernel", 56, 256, 20480),
    ]
    for n, g, b, l in launches:
        hdr.append(f"; @launch kernel={n} grid=({g},1,1) block=({b},1,1) lds={l}")
    hdr.append('.amdgcn_target "amdgcn-amd-amdhsa--gfx950"')
    hdr.append(".text")
    gemv_nsplit("k0_mod_kernel", "mod")
    gemv_nsplit("k1_q_kernel", "q")
    attn_kernel("k2_attn_kernel")
    wo_kernel("k3_wo_kernel")
    gu_kernel("k4_gu_kernel")
    dn_kernel("k5_dn_kernel")
    tail = ['.section .rodata,"a"']
    for n, v, s in KERNELS:
        nv = (v + 7) // 8 * 8
        tail += [".p2align 6", f".amdhsa_kernel {n}",
                 f"  .amdhsa_next_free_vgpr {nv}",
                 f"  .amdhsa_next_free_sgpr {s}",
                 f"  .amdhsa_accum_offset {nv}",
                 "  .amdhsa_group_segment_fixed_size 0",
                 "  .amdhsa_kernarg_size 112",
                 "  .amdhsa_user_sgpr_count 2",
                 "  .amdhsa_user_sgpr_kernarg_segment_ptr 1",
                 "  .amdhsa_system_sgpr_workgroup_id_x 1",
                 ".end_amdhsa_kernel"]
    open(OUT, "w").write("\n".join(hdr + a.lines + tail) + "\n")


main()
```
